```python
import torch

def _softmax(x, axis=-1):
    return torch.softmax(x, dim=axis)

def _gelu(x):
    return torch.nn.functional.gelu(x, approximate='tanh')

def _silu(x):
    return torch.nn.functional.silu(x)

def _sigmoid(x):
    return torch.sigmoid(x)

def _layernorm(x, axis=-1, eps=1e-05):
    m = x.mean(dim=axis, keepdim=True)
    v = x.var(dim=axis, keepdim=True, unbiased=False)
    return (x - m) / torch.sqrt(v + eps)

def _scatter_add(tgt, idx, src, axis=0):
    return tgt.clone().index_add_(axis, idx, src)

def _segment_sum(src, seg, n):
    out = torch.zeros((n,) + src.shape[1:], dtype=src.dtype)
    return out.index_add_(0, seg, src)

def _pad(x, pw):
    flat = tuple((v for pair in reversed(pw) for v in pair))
    return torch.nn.functional.pad(x, flat)
kernel_name = 'adaLN_cond__sliding_block_cached__swiglu_ffn__decode'

def setup_inputs():

    _w = lambda a: (lambda t: t.to(torch.bfloat16) if t.is_floating_point() else t)(torch.as_tensor(a))

    def _A_setup():
        B, Sq, D = (1, 1, 448)
        Hq, Hkv, Sk, Dh = (16, 8, 16384, 256)
        assert Hq % Hkv == 0, (Hq, Hkv)
        return {'x': _w((lambda *s: torch.randn(*s, dtype=torch.bfloat16) * 0.1)(B, Sq, D)), 'k_cache': _w((lambda *s: torch.randn(*s, dtype=torch.bfloat16) * 0.8)(B, Hkv, Sk, Dh)), 'v_cache': _w((lambda *s: torch.randn(*s, dtype=torch.bfloat16) * 1.6)(B, Hkv, Sk, Dh)), 'wq': _w((lambda *s: torch.randn(*s, dtype=torch.bfloat16) * 0.8)(D, Hq * Dh) * D ** (-0.5)), 'wo': _w((lambda *s: torch.randn(*s, dtype=torch.bfloat16) * 1.6)(Hq * Dh, D) * (Hq * Dh) ** (-0.5))}
    _A_in = _A_setup()

    def _B_setup():
        B, S, D, F = (1, 1, 448, 1792)
        return {'x': _w((lambda *s: torch.randn(*s, dtype=torch.bfloat16) * 0.1)(B, S, D)), 'w_gate': _w((lambda *s: torch.randn(*s, dtype=torch.bfloat16) * 0.2)(D, F)), 'w_up': _w((lambda *s: torch.randn(*s, dtype=torch.bfloat16) * 0.2)(D, F)), 'w_down': _w((lambda *s: torch.randn(*s, dtype=torch.bfloat16) * 0.2)(F, D))}
    _B_in = _B_setup()
    return {'A_x': _A_in['x'], 'A_k_cache': _A_in['k_cache'], 'A_v_cache': _A_in['v_cache'], 'A_wq': _A_in['wq'], 'A_wo': _A_in['wo'], 'B_x': _B_in['x'], 'B_w_gate': _B_in['w_gate'], 'B_w_up': _B_in['w_up'], 'B_w_down': _B_in['w_down'], 'c': _w((lambda *s: torch.randn(*s, dtype=torch.bfloat16) * 0.8)(1, 448) * 8.0), 'w_mod': _w((lambda *s: torch.randn(*s, dtype=torch.bfloat16) * 0.8)(448, 6 * 448) * 448 ** (-0.5) * 8.0)}

def reference(A_x, A_k_cache, A_v_cache, A_wq, A_wo, B_x, B_w_gate, B_w_up, B_w_down, c, w_mod):

    def _A_ref(x, k_cache, v_cache, wq, wo):
        B, Sq, D = x.shape
        Hq, Dh = (16, 256)
        Hkv, Sk = (k_cache.shape[1], k_cache.shape[2])
        W = min(4096, max(256, Sk // 4))
        rep = Hq // Hkv
        q = (lambda x, *d: x.permute(*d))((x @ wq).reshape(B, Sq, Hq, Dh), 0, 2, 1, 3)
        k = (lambda x, n, axis: torch.repeat_interleave(x, n, dim=axis))(k_cache[:, :, Sk - W:, :], rep, axis=1)
        v = (lambda x, n, axis: torch.repeat_interleave(x, n, dim=axis))(v_cache[:, :, Sk - W:, :], rep, axis=1)
        scores = torch.einsum('bhqd,bhkd->bhqk', q, k) * Dh ** (-0.5)
        p = _softmax(scores, axis=-1)
        o = torch.einsum('bhqk,bhkd->bhqd', p, v)
        return (lambda x, *d: x.permute(*d))(o, 0, 2, 1, 3).reshape(B, Sq, Hq * Dh) @ wo

    def _B_ref(x, w_gate, w_up, w_down):
        g = _silu(x @ w_gate)
        u = x @ w_up
        return g * u @ w_down
    x = A_x
    mod = (_silu(c) @ w_mod).reshape(c.shape[0], 6, 1, -1)
    sa, ca, ga, sb, cb, gb = (mod[:, 0].clone(), mod[:, 1].clone(), mod[:, 2].clone(), mod[:, 3].clone(), mod[:, 4].clone(), mod[:, 5].clone())
    h = _layernorm(x, axis=-1) * (1 + ca) + sa
    x = x + ga * _A_ref(h, A_k_cache, A_v_cache, A_wq, A_wo)
    h = _layernorm(x, axis=-1) * (1 + cb) + sb
    x = x + gb * _B_ref(h, B_w_gate, B_w_up, B_w_down)
    return x
```

```python
NAME='adaLN_cond__sliding_block_cached__swiglu_ffn__decode'
HDR='''; Kernarg layout (112 bytes): A_x 0, A_k_cache 8, A_v_cache 16, A_wq 24, A_wo 32, B_x 40, B_w_gate 48,
'''
class Asm:
    def __init__(self):
        self.lines=[]
        self.n=0
    def __call__(self, s=''):
        for l in s.split('\n'):
            self.lines.append('    '+l.strip() if (l.strip() and not l.strip().endswith(':')) else l.strip())
    def label(self, base='L'):
        self.n+=1
        return f'{base}_{self.n}'
    def text(self):
        return '\n'.join(self.lines)+'\n'
def single(body, grid, block, lds, vgpr, sgpr=102, accum=None):
    if accum is None:
        accum=min(256,(vgpr+3)//4*4)
    return f'''{HDR}; @launch grid=({grid},1,1) block=({block},1,1) lds={lds}
.amdgcn_target "amdgcn-amd-amdhsa--gfx950"
.text
.globl {NAME}_kernel
.p2align 8
.type {NAME}_kernel,@function
{NAME}_kernel:
{body}
.section .rodata,"a"
.p2align 6
.amdhsa_kernel {NAME}_kernel
  .amdhsa_next_free_vgpr {vgpr}
  .amdhsa_next_free_sgpr {sgpr}
  .amdhsa_accum_offset {accum}
  .amdhsa_group_segment_fixed_size 0
  .amdhsa_kernarg_size 112
  .amdhsa_user_sgpr_count 2
  .amdhsa_user_sgpr_kernarg_segment_ptr 1
  .amdhsa_system_sgpr_workgroup_id_x 1
.end_amdhsa_kernel
'''
```

```python
import re
TRANS=('v_exp_f32','v_log_f32','v_rcp_f32','v_rsq_f32','v_sqrt_f32','v_sin_f32','v_cos_f32')
def regs(tok):
    tok=tok.strip()
    neg=tok.lstrip('-')
    m=re.fullmatch(r'abs\((.*)\)|\|(.*)\|',neg)
    if m: neg=m.group(1) or m.group(2)
    m=re.fullmatch(r'([vsa])(\d+)',neg)
    if m: return {(m.group(1),int(m.group(2)))}
    m=re.fullmatch(r'([vsa])\[(\d+):(\d+)\]',neg)
    if m: return {(m.group(1),i) for i in range(int(m.group(2)),int(m.group(3))+1)}
    if neg=='vcc': return {('s','vcc')}
    if neg in('vcc_lo','vcc_hi'): return {('s','vcc')}
    if neg=='exec': return {('s','exec')}
    if neg=='m0': return {('s','m0')}
    return set()
def parse(line):
    s=line.split(';')[0].strip()
    if not s or s.endswith(':') or s.startswith('.'): return None
    p=s.split(None,1)
    mn=p[0]; rest=p[1] if len(p)>1 else ''
    ops=[o.strip() for o in rest.split(',')] if rest else []
    mods=''
    if ops:
        q=ops[-1].split(None,1)
    m=re.search(r'\s(quad_perm|row_|offset|op_sel|sc0|sc1|nt\b|glc|bitop3|neg_|clamp|mul:|bound_ctrl|bank_mask|lds\b|offen|cbsz|abid|blgp)',' '+rest)
    if m:
        mods=(' '+rest)[m.start():]; rest=(' '+rest)[:m.start()]
    ops=[o.strip() for o in rest.split(',') if o.strip()]
    return mn,ops,mods
def classify(mn,ops,mods):
    d=dict(valu=False,trans=False,mfma=False,vmem=False,ds=False,dpp=False,perm=False,rl=False,defs=set(),uses=set(),srcC=set(),ab=set(),store=set())
    R=[regs(o) for o in ops]
    U=lambda l: set().union(*l) if l else set()
    base=mn.replace('_e32','').replace('_e64','').replace('_dpp','')
    if mn.startswith('v_mfma'):
        d['mfma']=True; d['defs']=R[0]; d['ab']=R[1]|R[2]; d['srcC']=R[3]; d['uses']=R[1]|R[2]|R[3]
    elif mn.startswith('v_'):
        d['valu']=True; d['trans']=base in TRANS
        d['dpp']=('quad_perm' in mods or 'row_' in mods)
        if base.startswith('v_permlane') and 'swap' in base:
            d['perm']=True; d['defs']=R[0]|R[1]; d['uses']=R[0]|R[1]
        elif base in('v_add_co_u32','v_sub_co_u32','v_addc_co_u32'):
            d['defs']=R[0]|R[1]; d['uses']=U(R[2:])
        else:
            d['defs']=R[0]; d['uses']=U(R[1:])
            if base in('v_fmac_f32','v_dot2c_f32_bf16','v_writelane_b32') or (d['dpp'] and 'bound_ctrl' not in mods and False): d['uses']|=R[0]
        if d['dpp']: d['dppsrc']=R[1]
        if base in('v_readfirstlane_b32','v_readlane_b32'): d['rl']=True
    elif mn.startswith('global_') or mn.startswith('buffer_'):
        d['vmem']=True
        if 'load' in mn and 'lds' not in mn and ' lds' not in mods:
            d['defs']=R[0]; d['uses']=U(R[1:])
        else:
            d['uses']=U(R)
            if mn.endswith('x4') or mn.endswith('x3'):
                d['store']=R[1] if mn.startswith('global_') else R[0]
    elif mn.startswith('ds_'):
        d['ds']=True
        if 'read' in mn or 'permute' in mn or 'swizzle' in mn or 'rtn' in mn:
            d['defs']=R[0]; d['uses']=U(R[1:])
        else: d['uses']=U(R)
    else:
        if mn.startswith('s_cmp') or mn.startswith('s_cbranch') or mn in('s_branch','s_waitcnt','s_barrier','s_nop','s_endpgm','s_sleep','s_setprio','s_bitcmp1_b32','s_bitcmp0_b32'):
            d['uses']=U(R)
        else:
            d['defs']=R[0] if R else set(); d['uses']=U(R[1:])
    return d
def need(p,c):
    n=0
    vdef={r for r in p['defs'] if r[0] in 'va'}; sdef={r for r in p['defs'] if r[0]=='s'}
    if p['valu']:
        if c['dpp'] and vdef & c['dppsrc']: n=max(n,2)
        if c['perm'] and vdef & c['uses']: n=max(n,2)
        if c['mfma'] and vdef & c['uses']: n=max(n,2)
        if c['rl'] and vdef & c['uses']: n=max(n,1)
        if p['trans'] and (c['valu'] or c['mfma']) and not c['trans'] and vdef & c['uses']: n=max(n,1)
        if sdef:
            if c['valu'] and sdef & c['uses']: n=max(n,2 if not c['rl'] else 4)
            if c['vmem'] and sdef & c['uses']: n=max(n,5)
            if not (c['valu'] or c['vmem'] or c['ds'] or c['mfma']) and (sdef-{('s','vcc')}) & c['uses']: n=max(n,1)
    if p['mfma']:
        if c['mfma']:
            if vdef & c['ab']: n=max(n,8)
            if vdef & c['srcC'] and vdef!=c['srcC']: n=max(n,6)
            if vdef & c['defs'] and not (vdef==c['srcC']==c['defs']) : n=max(n,6)
        elif c['valu'] or c['vmem'] or c['ds']:
            if vdef & (c['uses']|c['defs']): n=max(n,8)
            if c['valu'] and p['srcC'] & c['defs']: n=max(n,3)
    if p['store'] and (c['valu'] or c['mfma']) and p['store'] & c['defs']: n=max(n,2)
    if p['store'] and (c['vmem'] or c['ds']) and p['store'] & c['defs']: n=max(n,1)
    return n
def pad(text):
    out=[]; hist=[]
    total=0
    for line in text.split('\n'):
        pr=parse(line)
        if pr is None:
            out.append(line); continue
        mn,ops,mods=pr
        c=classify(mn,ops,mods)
        req=0
        for (p,dist) in hist:
            k=need(p,c)-dist
            if k>req: req=k
        if req>0:
            out.append(f'    s_nop {req-1}'); total+=1
            hist=[(p,dd+req) for p,dd in hist]
        out.append(line)
        w=1
        if mn=='s_nop': w=int(ops[0])+1
        hist=[(p,dd+w) for p,dd in hist if dd+w<12]
        hist.append((c,0))
        if mn in('s_branch','s_endpgm'): hist=[]
    return '\n'.join(out)
if __name__=='__main__':
    t='''v_mov_b32 v1, v2
v_add_f32_dpp v3, v1, v4 quad_perm:[0,0,0,0] row_mask:0xf bank_mask:0xf
v_mfma_f32_16x16x32_bf16 v[4:7], v[0:3], v[8:11], 0
v_add_f32 v12, v4, v5
v_exp_f32 v13, v12
v_mul_f32 v14, v13, v13
v_cmp_ne_u32 vcc, 0, v14
v_cndmask_b32 v1, v2, v3, vcc
v_readfirstlane_b32 s4, v1
global_load_dword v1, v2, s[4:5] offset:16 sc1
'''
    print(pad(t))
```

```python
import sys
from asmgen import Asm, NAME
from hazard import pad

STAMP_OFF=200*1024*1024
WS_XT =0x400
WS_H2 =0x1000
WS_H4 =0x8000
WS_H1 =0x10000
WS_H5 =0x28000
WS_H35=0x60000
WS_H3 =0xD0000
L_Q=0; L_MX=1024; L_LS=1056; L_FLAG=1088; L_P=2048; L_MT=10240; L_MD=11264
L_TB=0; L_DD=2048; L_ST=9216; L_X1=9344; L_GB=11136; L_ACT=12928
LOG2E=1.4426950408889634
import struct
def f2u(x): return struct.unpack('<I',struct.pack('<f',x))[0]
DPPF='row_mask:0xf bank_mask:0xf'

class G:
    def __init__(s, debug=False, win=3, nt='nt', local=True, limit=200000, prefetch=True, prewarm=True, wnt='nt', sleep4=0, sleep5=0, sleep3=0, sleepq=0):
        s.a=Asm(); s.debug=debug; s.win=win; s.nt=nt; s.local=local; s.limit=limit; s.prefetch=prefetch; s.prewarm=prewarm
        s.wnt=wnt; s.sleep4=sleep4; s.sleep5=sleep5; s.sleep3=sleep3; s.sleepq=sleepq
    def stamp(s,i):
        if s.debug: s.a(f's_memrealtime s[{64+2*i}:{65+2*i}]')
    def end(s):
        a=s.a
        if s.debug:
            a('s_memrealtime s[94:95]\ns_waitcnt lgkmcnt(0)\ns_mov_b64 exec, -1\nv_mov_b32 v2, 0')
            for i in range(16): a(f'v_writelane_b32 v2, s{64+2*i}, {i}')
            a(f'''s_lshl_b32 s36, s2, 3
            s_add_u32 s36, s36, s33
            s_lshl_b32 s36, s36, 6
            s_add_u32 s36, s36, {STAMP_OFF}
            v_lshl_add_u32 v3, v1, 2, s36
            s_mov_b64 exec, 0xffff
            global_store_dword v3, v2, s[30:31]''')
        a('s_endpgm')
    def rnd(s,dst,src,tmp=None):
        t=tmp or dst
        s.a(f'v_cvt_pk_bf16_f32 {t}, {src}, {src}\nv_and_b32 {dst}, 0xffff0000, {t}')
    def masks(s,r):
        a=s.a
        a(f'''v_and_b32 v{r}, 1, v1
        v_lshlrev_b32 v{r}, 4, v{r}
        v_mov_b32 v{r+1}, 0xffff
        v_lshlrev_b32 v{r+3}, v{r}, v{r+1}
        v_bfe_u32 v{r}, v1, 1, 2
        v_cmp_eq_u32 vcc, 1, v{r}
        v_cmp_eq_u32 s[36:37], 2, v{r}
        v_cmp_eq_u32 s[38:39], 3, v{r}
        v_cmp_eq_u32 s[40:41], 0, v{r}
        v_cndmask_b32 v{r+1}, 0, v{r+3}, vcc
        v_cndmask_b32 v{r+2}, 0, v{r+3}, s[36:37]
        v_cndmask_b32 v{r}, 0, v{r+3}, s[40:41]
        v_cndmask_b32 v{r+3}, 0, v{r+3}, s[38:39]''')
    def tagcheck(s,tags,t,pre=None):
        a=s.a; outs=[]; i=0; k=t
        while i<len(tags):
            if i+1<len(tags): a(f'v_bitop3_b32 v{k}, v{tags[i]}, v{tags[i+1]}, s32 bitop3:0x7e'); i+=2
            else: a(f'v_xor_b32 v{k}, s32, v{tags[i]}'); i+=1
            outs.append(k); k+=1
        while len(outs)>1:
            if len(outs)>=3: a(f'v_or3_b32 v{outs[0]}, v{outs[0]}, v{outs[1]}, v{outs[2]}'); outs=[outs[0]]+outs[3:]
            else: a(f'v_or_b32 v{outs[0]}, v{outs[0]}, v{outs[1]}'); outs=[outs[0]]
        a(f'v_cmp_ne_u32 vcc, 0, v{outs[0]}')
    def poll(s,loads,tags,t,sleep=0):
        a=s.a; lp=a.label('poll'); dn=a.label('pdone')
        a(f's_mov_b32 s42, 0\n{lp}:')
        a(loads); a('s_waitcnt vmcnt(0)')
        s.tagcheck(tags,t)
        a(f's_cbranch_vccz {dn}')
        if sleep: a(f's_sleep {sleep}')
        a(f's_add_u32 s42, s42, 1\ns_cmp_lt_u32 s42, {s.limit}\ns_cbranch_scc1 {lp}\n{dn}:')
    def gemv_steps(s,D,A,dup,n,mk,B,dpp=None):
        a=s.a
        for i in range(n):
            b=B+4*(i&1)
            for r in range(4):
                if dpp: a(f'v_and_b32_dpp v{b+r}, v{dpp(i)[0]}, v{mk+r} quad_perm:[{dpp(i)[1]},{dpp(i)[1]},{dpp(i)[1]},{dpp(i)[1]}] {DPPF}')
                else: a(f'v_and_b32 v{b+r}, v{dup+i}, v{mk+r}')
            if i>0:
                j=i-1; bj=B+4*(j&1)
                a(f'v_mfma_f32_16x16x32_bf16 v[{D}:{D+3}], v[{A+4*j}:{A+4*j+3}], v[{bj}:{bj+3}], {"0" if j==0 else f"v[{D}:{D+3}]"}')
        j=n-1; bj=B+4*(j&1)
        a(f'v_mfma_f32_16x16x32_bf16 v[{D}:{D+3}], v[{A+4*j}:{A+4*j+3}], v[{bj}:{bj+3}], v[{D}:{D+3}]')
    def bfly(s,op,v,t,which):
        s.a(f'v_mov_b32 v{t}, v{v}\nv_permlane{which}_swap_b32 v{t}, v{v}\n{op} v{v}, v{v}, v{t}')
    def wavesum(s,v,t):
        for k in (1,2,4,8): s.a(f'v_add_f32_dpp v{v}, v{v}, v{v} row_ror:{k} {DPPF}')
        s.bfly('v_add_f32',v,t,16); s.bfly('v_add_f32',v,t,32)
    def silu(s,dst,x,t):
        s.a(f'''v_mul_f32 v{t}, {hex(f2u(-LOG2E))}, v{x}
        v_exp_f32 v{t}, v{t}
        v_add_f32 v{t}, 1.0, v{t}
        v_rcp_f32 v{t}, v{t}
        v_mul_f32 v{dst}, v{x}, v{t}''')
    def store2(s,ins):
        a=s.a
        if not s.local: a(ins+' sc1'); return
        l1=a.label('st'); l2=a.label('st')
        a(f's_cmp_eq_u32 s43, 0\ns_cbranch_scc1 {l1}\n{ins}\ns_branch {l2}\n{l1}:\n{ins} sc1\n{l2}:')

    def prologue(s):
        a=s.a
        if s.debug:
            for i in range(64,96,2): a(f's_mov_b64 s[{i}:{i+1}], 0')
        s.stamp(0)
        a('''s_cmp_ge_u32 s2, 256
        s_cbranch_scc1 L_exit
        s_load_dwordx4 s[28:31], s[0:1], 96
        s_load_dwordx16 s[4:19], s[0:1], 0
        s_load_dwordx8 s[20:27], s[0:1], 64
        v_lshrrev_b32 v2, 6, v0
        v_and_b32 v1, 63, v0
        s_and_b32 s34, s2, 7
        s_lshr_b32 s35, s2, 3
        v_readfirstlane_b32 s33, v2
        s_cmp_ge_u32 s35, 24
        s_cbranch_scc1 L_aux
        s_cmp_ge_u32 s33, 4
        s_cbranch_scc0 L_R''')
    def awave(s):
        a=s.a; NG=11
        K=8; V=K+8*NG; D=V+8*NG
        S=200; Q=212; MK=220; O=224; T=232
        vK=2; vV=3
        a(f'''; ---------------- attention wave ----------------
        s_sub_u32 s44, s33, 4
        s_mul_i32 s36, s44, 24
        s_add_u32 s45, s36, s35
        s_lshl_b32 s37, s34, 23
        s_lshl_b32 s38, s45, 11
        s_add_u32 s37, s37, s38
        s_add_u32 s37, s37, {12288*512}
        v_lshrrev_b32 v4, 4, v1
        v_and_b32 v5, 15, v1
        v_lshlrev_b32 v{vV}, 9, v4
        v_lshl_add_u32 v{vV}, v5, 4, v{vV}
        v_and_b32 v6, 3, v1
        v_lshlrev_b32 v6, 4, v6
        v_lshl_add_u32 v6, v4, 6, v6
        v_lshrrev_b32 v5, 2, v5
        v_lshl_add_u32 v{vK}, v5, 9, v6
        s_waitcnt lgkmcnt(0)
        s_add_u32 s6, s6, s37
        s_addc_u32 s7, s7, 0
        s_add_u32 s8, s8, s37
        s_addc_u32 s9, s9, 0
        s_load_dword s32, s[30:31], 0''')
        n=[0]
        def pair(reg,voff,base):
            if n[0]>=s.win: a(f's_waitcnt vmcnt({2*(s.win-1)})')
            a(f'global_load_dwordx4 v[{reg}:{reg+3}], v{voff}, {base} {s.nt}')
            a(f'global_load_dwordx4 v[{reg+4}:{reg+7}], v{voff}, {base} offset:256 {s.nt}')
            n[0]+=1
        for (R,vo,base,nm) in ((K,vK,'s[6:7]','K'),(V,vV,'s[8:9]','V')):
            sk=a.label('skip')
            a(f's_cmp_ge_u32 s45, 64\ns_cbranch_scc1 {sk}\nv_add_u32 v7, {10*196608}, v{vo}')
            pair(R+80,7,base)
            a(f'{sk}:')
            for i in range(10):
                pair(R+8*i,vo,base)
                if i<9: a(f'v_add_u32 v{vo}, {196608}, v{vo}')
                if nm=='K' and i==2:
                    s.masks(MK)
                    sk2=a.label('z')
                    a(f's_cmp_lt_u32 s45, 64\ns_cbranch_scc1 {sk2}')
                    for r in range(8): a(f'v_mov_b32 v{V+80+r}, 0')
                    a(f'{sk2}:')
                    a(f'''v_bfe_u32 v5, v1, 3, 1
                    v_lshl_add_u32 v{T+8}, v5, 9, v6
                    s_lshl_b32 s36, s44, 2
                    v_lshl_add_u32 v{T+9}, v5, 4, s36
                    v_lshlrev_b32 v{T+10}, 4, v5
                    s_lshl_b32 s36, s44, 11
                    s_add_u32 s36, s36, {L_P}
                    v_lshl_add_u32 v{T+11}, v1, 4, s36
                    s_and_b32 s36, s44, 1
                    s_lshl_b32 s36, s36, 10
                    s_lshr_b32 s46, s44, 1
                    s_lshl_b32 s37, s46, 7
                    s_add_u32 s36, s36, s37
                    s_add_u32 s36, s36, {L_P}
                    v_and_b32 v5, 15, v1
                    v_lshl_add_u32 v{T+12}, v5, 3, s36
                    v_lshl_add_u32 v{T+12}, v4, 8, v{T+12}
                    s_lshl_b32 s36, s34, 4
                    s_lshl_b32 s37, s44, 2
                    s_add_u32 s36, s36, s37
                    s_mul_i32 s36, s36, 6144
                    s_lshl_b32 s37, s35, 8
                    s_add_u32 s36, s36, s37
                    s_add_u32 s36, s36, {WS_H3}
                    v_mul_u32_u24 v{T+13}, 6144, v4
                    v_lshl_add_u32 v{T+13}, v5, 4, v{T+13}
                    v_add_u32 v{T+13}, s36, v{T+13}
                    s_lshl_b32 s36, s46, 4
                    v_mov_b32 v{T+14}, s36
                    s_waitcnt lgkmcnt(0)
                    s_add_u32 s32, s32, 0x9e3779b9''')
            if nm=='K':
                s.stamp(1); a('s_barrier')
        s.stamp(2)
        a('s_barrier')
        s.stamp(3)
        a(f'''ds_read_b128 v[{Q}:{Q+3}], v{T+8} offset:{L_Q}
        ds_read_b128 v[{Q+4}:{Q+7}], v{T+8} offset:{L_Q+256}
        v_mov_b32 v{T}, 0
        ds_read_b32 v{T+1}, v{T} offset:{L_FLAG}
        s_waitcnt lgkmcnt(0)
        v_readfirstlane_b32 s43, v{T+1}''')
        def diag(i):
            d=D+4*(i%4)
            a(f'''v_mov_b32_dpp v{S+i}, v{d} quad_perm:[0,0,0,0] {DPPF}
            v_add_f32_dpp v{S+i}, v{d+1}, v{S+i} quad_perm:[1,1,1,1] {DPPF}
            v_add_f32_dpp v{S+i}, v{d+2}, v{S+i} quad_perm:[2,2,2,2] {DPPF}
            v_add_f32_dpp v{S+i}, v{d+3}, v{S+i} quad_perm:[3,3,3,3] {DPPF}''')
        for i in range(NG):
            d=D+4*(i%4)
            a(f'v_mfma_f32_16x16x32_bf16 v[{d}:{d+3}], v[{K+8*i}:{K+8*i+3}], v[{Q}:{Q+3}], 0')
            a(f'v_mfma_f32_16x16x32_bf16 v[{d}:{d+3}], v[{K+8*i+4}:{K+8*i+7}], v[{Q+4}:{Q+7}], v[{d}:{d+3}]')
            if i>=2: diag(i-2)
        diag(NG-2); diag(NG-1)
        sk=a.label('inf')
        a(f's_cmp_lt_u32 s45, 64\ns_cbranch_scc1 {sk}\nv_mov_b32 v{S+10}, 0xff800000\n{sk}:')
        for i in range(0,NG,2):
            j=min(i+1,NG-1)
            a(f'v_cvt_pk_bf16_f32 v{T}, v{S+i}, v{S+j}\nv_lshlrev_b32 v{S+i}, 16, v{T}')
            if j!=i: a(f'v_and_b32 v{S+j}, 0xffff0000, v{T}')
        a(f'''v_max3_f32 v{T}, v{S}, v{S+1}, v{S+2}
        v_max3_f32 v{T+1}, v{S+3}, v{S+4}, v{S+5}
        v_max3_f32 v{T+2}, v{S+6}, v{S+7}, v{S+8}
        v_max3_f32 v{T}, v{T}, v{S+9}, v{S+10}
        v_max3_f32 v{T}, v{T}, v{T+1}, v{T+2}''')
        s.bfly('v_max_f32',T,T+1,16); s.bfly('v_max_f32',T,T+1,32)
        a(f'''ds_write_b32 v{T+9}, v{T} offset:{L_MX}
        s_waitcnt lgkmcnt(0)
        s_barrier
        ds_read_b128 v[{T}:{T+3}], v{T+10} offset:{L_MX}
        s_mov_b32 s47, {hex(f2u(LOG2E/16))}
        s_waitcnt lgkmcnt(0)
        v_max3_f32 v{T}, v{T}, v{T+1}, v{T+2}
        v_max_f32 v{T}, v{T}, v{T+3}
        v_mul_f32 v{T}, s47, v{T}''')
        for i in range(NG): a(f'v_fma_f32 v{S+i}, v{S+i}, s47, -v{T}')
        for i in range(NG): a(f'v_exp_f32 v{S+i}, v{S+i}')
        a(f'v_readlane_b32 s48, v{T}, 0\nv_readlane_b32 s49, v{T}, 8')
        B=K
        order=[10]+list(range(10))
        for i in order:
            a(f'v_cvt_pk_bf16_f32 v{T+1}, v{S+i}, v{S+i}')
            for r in range(4): a(f'v_and_b32 v{B+4*i+r}, v{T+1}, v{MK+r}')
        a(f'''v_add_f32 v{T+2}, v{S}, v{S+1}''')
        for i in range(2,NG): a(f'v_add_f32 v{T+2}, v{T+2}, v{S+i}')
        s.bfly('v_add_f32',T+2,T+3,16); s.bfly('v_add_f32',T+2,T+3,32)
        a(f'''ds_write_b32 v{T+9}, v{T+2} offset:{L_LS}
        s_cmp_eq_u32 s46, 0
        s_cselect_b32 s48, s48, s49''')
        s.stamp(4)
        for n_,i in enumerate(order):
            left=NG-1-n_
            if left==s.win-1 or left<s.win-1: a(f's_waitcnt vmcnt({2*left})')
            c0='0' if n_==0 else f'v[{O}:{O+3}]'; c1='0' if n_==0 else f'v[{O+4}:{O+7}]'
            a(f'v_mfma_f32_16x16x32_bf16 v[{O}:{O+3}], v[{V+8*i}:{V+8*i+3}], v[{B+4*i}:{B+4*i+3}], {c0}')
            a(f'v_mfma_f32_16x16x32_bf16 v[{O+4}:{O+7}], v[{V+8*i+4}:{V+8*i+7}], v[{B+4*i}:{B+4*i+3}], {c1}')
        s.stamp(5)
        a(f'''ds_write_b128 v{T+11}, v[{O}:{O+3}]
        ds_write_b128 v{T+11}, v[{O+4}:{O+7}] offset:1024
        s_waitcnt lgkmcnt(0)
        s_barrier
        ds_read_b128 v[8:11], v{T+14} offset:{L_LS}
        ds_read_b64 v[12:13], v{T+12}
        ds_read_b64 v[14:15], v{T+12} offset:2048
        ds_read_b64 v[16:17], v{T+12} offset:4096
        ds_read_b64 v[18:19], v{T+12} offset:6144
        v_mov_b32 v23, s32''')
        a('s_waitcnt lgkmcnt(0)' if s.debug else 's_waitcnt lgkmcnt(4)')
        a(f'''v_add_f32 v8, v8, v9
        v_add_f32 v10, v10, v11
        v_add_f32 v8, v8, v10
        v_rcp_f32 v9, v8
        v_log_f32 v10, v8
        s_waitcnt lgkmcnt(0)
        v_pk_add_f32 v[12:13], v[12:13], v[14:15]
        v_pk_add_f32 v[16:17], v[16:17], v[18:19]
        v_add_f32 v22, s48, v10
        v_pk_add_f32 v[12:13], v[12:13], v[16:17]
        v_mul_f32 v20, v12, v9
        v_mul_f32 v21, v13, v9''')
        s.store2(f'global_store_dwordx4 v{T+13}, v[20:23], s[30:31]')
        s.stamp(6)
        s.end()
    def rwave(s):
        a=s.a
        MK=4; A=8; DUP=64; B=80; D=88; T=92
        a(f'''L_R:
        s_waitcnt lgkmcnt(0)
        s_load_dword s32, s[30:31], 0
        s_cmp_eq_u32 s33, 1
        s_cbranch_scc0 L_R_notm
        s_cmp_lt_u32 s35, 21
        s_cbranch_scc0 L_R_notm
        s_mul_i32 s36, s34, 21
        s_add_u32 s36, s36, s35
        s_lshr_b32 s44, s36, 2
        s_and_b32 s45, s36, 3
        v_min_u32 v2, 55, v1
        s_mul_i32 s37, s45, 224
        v_lshl_add_u32 v3, v2, 2, s37
        global_load_dword v{T}, v3, s[22:23]
        s_mul_i32 s37, s45, {112*5376}
        s_lshl_b32 s38, s44, 7
        s_add_u32 s37, s37, s38
        v_lshrrev_b32 v{T+1}, 3, v1
        v_mul_u32_u24 v3, {14*5376}, v{T+1}
        v_and_b32 v{T+2}, 7, v1
        v_lshlrev_b32 v{T+2}, 4, v{T+2}
        v_add3_u32 v3, v3, v{T+2}, s37''')
        for i in range(14):
            a(f'global_load_dwordx4 v[{A+4*i}:{A+4*i+3}], v3, s[24:25] {s.wnt}')
            if i<13: a('v_add_u32 v3, 5376, v3')
        s.masks(MK)
        a(f'''v_mul_u32_u24 v3, 37, v2
        v_lshrrev_b32 v3, 8, v3
        v_mul_u32_u24 v{T+3}, 7, v3
        v_sub_u32 v{T+3}, v2, v{T+3}
        v_lshlrev_b32 v{T+3}, 3, v{T+3}
        v_lshl_add_u32 v3, v3, 6, v{T+3}
        v_lshlrev_b32 v{T+1}, 6, v{T+1}
        v_lshlrev_b32 v{T+8}, 4, v1
        v_lshrrev_b32 v{T+9}, 5, v1
        v_lshl_add_u32 v{T+9}, v{T+9}, 8, v{T+2}
        v_bfe_u32 v{T+10}, v1, 3, 2
        v_lshl_add_u32 v{T+9}, v{T+10}, 2, v{T+9}
        v_add_u32 v{T+9}, {L_MD}, v{T+9}
        s_mul_i32 s37, s45, 21504
        s_lshl_b32 s38, s44, 9
        s_add_u32 s37, s37, s38
        s_add_u32 s37, s37, {WS_H1}
        v_lshl_add_u32 v{T+10}, v1, 3, s37
        s_waitcnt vmcnt(14) lgkmcnt(0)
        s_add_u32 s32, s32, 0x9e3779b9
        v_lshlrev_b32 v{T+4}, 16, v{T}
        v_and_b32 v{T+5}, 0xffff0000, v{T}''')
        s.silu(T+4,T+4,T+6); s.silu(T+5,T+5,T+7)
        a(f'''v_cvt_pk_bf16_f32 v{T+4}, v{T+4}, v{T+4}
        v_cvt_pk_bf16_f32 v{T+5}, v{T+5}, v{T+5}
        ds_write_b64 v3, v[{T+4}:{T+5}] offset:{L_MT}
        ds_read_b128 v[{DUP}:{DUP+3}], v{T+1} offset:{L_MT}
        ds_read_b128 v[{DUP+4}:{DUP+7}], v{T+1} offset:{L_MT+16}
        ds_read_b128 v[{DUP+8}:{DUP+11}], v{T+1} offset:{L_MT+32}
        ds_read_b64 v[{DUP+12}:{DUP+13}], v{T+1} offset:{L_MT+48}
        s_waitcnt vmcnt(0) lgkmcnt(0)''')
        s.stamp(1)
        s.gemv_steps(D,A,DUP,14,MK,B)
        a(f'''ds_write_b128 v{T+8}, v[{D}:{D+3}] offset:{L_MD}
        ds_read2_b32 v[{T+4}:{T+5}], v{T+9} offset0:0 offset1:160
        s_waitcnt lgkmcnt(0)
        v_add_f32 v{T+4}, v{T+4}, v{T+5}
        v_mov_b32 v{T+5}, s32
        global_store_dwordx2 v{T+10}, v[{T+4}:{T+5}], s[30:31] sc1''')
        s.stamp(2)
        a('s_branch L_R_x0\nL_R_notm:')
        a('s_waitcnt lgkmcnt(0)\ns_add_u32 s32, s32, 0x9e3779b9')
        if s.prefetch:
            a(f'''s_cmp_eq_u32 s33, 2
            s_cbranch_scc0 L_R_nopf
            s_getpc_b64 s[36:37]
            L_pc:
            s_sub_u32 s36, s36, L_pc-{NAME}_kernel
            s_subb_u32 s37, s37, 0
            s_and_b32 s38, s35, 3
            s_lshl_b32 s38, s38, 12
            v_lshl_add_u32 v2, v1, 6, s38
            v_min_u32 v2, L_exit-{NAME}_kernel, v2
            global_load_dword v3, v2, s[36:37]
            L_R_nopf:''')
        a(f'''s_cmp_eq_u32 s33, 0
        s_cbranch_scc0 L_R_x0
        s_getreg_b32 s44, hwreg(HW_REG_XCC_ID, 0, 4)
        s_lshl_b32 s36, s34, 8
        s_lshl_b32 s37, s35, 3
        s_add_u32 s37, s37, s36
        s_add_u32 s37, s37, {WS_XT}
        v_mov_b32 v2, s37
        v_mov_b32 v4, s44
        v_mov_b32 v5, s32
        s_mov_b64 exec, 1
        global_store_dwordx2 v2, v[4:5], s[30:31] sc1
        s_mov_b64 exec, -1
        s_add_u32 s36, s36, {WS_XT}
        v_min_u32 v2, 23, v1
        v_lshl_add_u32 v2, v2, 3, s36
        s_lshl_b32 s36, s34, 11
        s_add_u32 s36, s36, {WS_H2}
        v_lshl_add_u32 v3, v1, 4, s36
        v_lshlrev_b32 v6, 3, v1
        s_barrier''')
        s.stamp(3)
        s.poll('''global_load_dwordx4 v[8:11], v3, s[30:31] sc1
        global_load_dwordx4 v[12:15], v3, s[30:31] offset:1024 sc1
        global_load_dwordx2 v[16:17], v2, s[30:31] sc1''',[9,11,13,15,17],20,s.sleepq)
        a(f'''v_cmp_ne_u32 vcc, s44, v16
        v_mov_b32 v9, v10
        v_mov_b32 v13, v14
        s_cmp_eq_u64 vcc, 0
        s_cselect_b32 s43, 1, 0
        ds_write_b64 v6, v[8:9] offset:{L_Q}
        ds_write_b64 v6, v[12:13] offset:{L_Q+512}
        v_mov_b32 v7, s43
        v_mov_b32 v8, 0
        ds_write_b32 v8, v7 offset:{L_FLAG}
        s_waitcnt lgkmcnt(0)''')
        s.stamp(4)
        if s.debug: a('s_mov_b32 s90, s42\ns_mov_b32 s92, s43')
        a('''s_branch L_R_x
        L_R_x0:
        s_cmp_ge_u32 s35, 16
        s_cbranch_scc1 L_R_end
        s_barrier
        L_R_x:
        s_barrier
        s_cmp_ge_u32 s35, 16
        s_cbranch_scc1 L_R_end''')
        A=8; G3=40; T=64; B=80; D=88
        a(f'''; ---------------- output projection: 32 rows x 112 columns of wo per wave ----------------
        s_lshl_b32 s36, s34, 9
        s_lshl_b32 s37, s35, 5
        s_add_u32 s36, s36, s37
        s_mul_i32 s36, s36, 896
        s_mul_i32 s37, s33, 224
        s_add_u32 s36, s36, s37
        v_lshrrev_b32 v2, 4, v1
        v_and_b32 v3, 15, v1
        v_min_u32 v3, 13, v3
        v_mul_u32_u24 v{T}, 1792, v2
        v_lshl_add_u32 v3, v3, 4, s36
        v_add_u32 v3, v3, v{T}''')
        for k in range(4):
            a(f'global_load_dwordx4 v[{A+4*k}:{A+4*k+3}], v3, s[12:13] {s.wnt}')
            a(f'global_load_dwordx4 v[{A+16+4*k}:{A+16+4*k+3}], v3, s[12:13] offset:896 {s.wnt}')
            if k<3: a('v_add_u32 v3, 7168, v3')
        a(f'v_mov_b32 v{T}, 0\nds_read_b32 v{T+1}, v{T} offset:{L_FLAG}')
        s.masks(MK)
        a(f'''s_lshl_b32 s36, s34, 4
        s_add_u32 s36, s36, s35
        s_mul_i32 s36, s36, 6144
        s_add_u32 s36, s36, {WS_H3+2048}
        v_bfe_u32 v3, v1, 2, 2
        v_lshlrev_b32 v3, 8, v3
        v_lshl_add_u32 v3, v2, 6, v3
        v_and_b32 v2, 3, v1
        v_lshl_add_u32 v3, v2, 4, v3
        v_add_u32 v3, s36, v3
        s_mul_i32 s36, s34, 57344
        s_add_u32 s44, s36, {WS_H35}
        s_mul_i32 s37, s33, {7*2048}
        s_lshl_b32 s38, s35, 7
        s_add_u32 s36, s44, s37
        s_add_u32 s36, s36, s38
        v_lshrrev_b32 v2, 3, v1
        v_lshlrev_b32 v2, 11, v2
        v_and_b32 v{T+2}, 7, v1
        v_lshl_add_u32 v2, v{T+2}, 4, v2
        v_add_u32 v2, s36, v2
        s_lshl_b32 s36, s35, 1
        s_add_u32 s45, s36, s33
        s_lshl_b32 s36, s45, 11
        s_add_u32 s36, s36, s44
        v_lshl_add_u32 v100, v1, 4, s36
        s_mul_i32 s36, s34, 3584
        s_lshl_b32 s37, s45, 7
        s_add_u32 s36, s36, s37
        s_add_u32 s36, s36, {WS_H4}
        v_lshl_add_u32 v101, v1, 4, s36
        s_mov_b32 s46, 0xff00ff00
        s_mov_b32 s47, 0xff00ff00
        s_waitcnt lgkmcnt(0)
        v_readfirstlane_b32 s43, v{T+1}
        s_barrier
        s_barrier''')
        s.stamp(5)
        s.poll('\n'.join(f'global_load_dwordx4 v[{G3+4*k}:{G3+4*k+3}], v3, s[30:31] offset:{1024*k-2048} sc1' for k in range(6)),[G3+4*k+3 for k in range(6)],T,s.sleep3)
        s.stamp(6)
        if s.debug: a('s_mov_b32 s88, s42')
        L=lambda k:G3+4*k+2
        a(f'''v_max3_f32 v{T}, v{L(0)}, v{L(1)}, v{L(2)}
        v_max3_f32 v{T+1}, v{L(3)}, v{L(4)}, v{L(5)}
        v_max_f32 v{T}, v{T}, v{T+1}
        v_max_f32_dpp v{T}, v{T}, v{T} row_ror:4 {DPPF}
        v_max_f32_dpp v{T}, v{T}, v{T} row_ror:8 {DPPF}''')
        for k in range(6): a(f'v_sub_f32 v{L(k)}, v{L(k)}, v{T}')
        for k in range(6): a(f'v_exp_f32 v{L(k)}, v{L(k)}')
        a(f'v_mul_f32 v{T+2}, v{G3}, v{L(0)}\nv_mul_f32 v{T+3}, v{G3+1}, v{L(0)}\nv_add_f32 v{T+1}, v{L(0)}, v{L(1)}')
        for k in range(1,6):
            a(f'v_fmac_f32 v{T+2}, v{G3+4*k}, v{L(k)}\nv_fmac_f32 v{T+3}, v{G3+4*k+1}, v{L(k)}')
            if k<5: a(f'v_add_f32 v{T+1}, v{T+1}, v{L(k+1)}')
        for k in (4,8):
            for r in (1,2,3): a(f'v_add_f32_dpp v{T+r}, v{T+r}, v{T+r} row_ror:{k} {DPPF}')
        a(f'''v_rcp_f32 v{T+1}, v{T+1}
        v_mul_f32 v{T+2}, v{T+2}, v{T+1}
        v_mul_f32 v{T+3}, v{T+3}, v{T+1}
        v_cvt_pk_bf16_f32 v{T+2}, v{T+2}, v{T+2}
        v_cvt_pk_bf16_f32 v{T+3}, v{T+3}, v{T+3}''')
        s.gemv_steps(D,A,None,8,MK,B,dpp=lambda k:(T+2+(k&1),k>>1))
        a(f'''v_mov_b32 v{T+6}, s32
        v_mov_b32 v{T+7}, s32
        v_cndmask_b32 v{T+4}, v{D}, v{D+2}, s[46:47]
        v_cndmask_b32 v{T+5}, v{D+1}, v{D+3}, s[46:47]
        s_mov_b32 exec_hi, 0x00ffffff''')
        s.store2(f'global_store_dwordx4 v2, v[{T+4}:{T+7}], s[30:31]')
        a('s_mov_b32 exec_hi, -1')
        s.stamp(7)
        a('''s_cmp_ge_u32 s33, 2
        s_cbranch_scc1 L_R_end
        s_cmp_ge_u32 s35, 14
        s_cbranch_scc1 L_R_end''')
        s.poll('global_load_dwordx4 v[8:11], v100, s[30:31] sc1\nglobal_load_dwordx4 v[12:15], v100, s[30:31] offset:1024 sc1',[10,14],16,s.sleep3)
        s.stamp(8)
        if s.debug: a('s_mov_b32 s86, s42')
        a(f'''v_pk_add_f32 v[8:9], v[8:9], v[12:13]
        v_add_f32_dpp v8, v8, v8 row_ror:8 {DPPF}
        v_add_f32_dpp v9, v9, v9 row_ror:8 {DPPF}
        v_mov_b32 v12, v8
        v_mov_b32 v13, v9
        v_permlane16_swap_b32 v12, v8
        v_permlane16_swap_b32 v13, v9
        v_pk_add_f32 v[8:9], v[8:9], v[12:13]
        v_mov_b32 v12, v8
        v_mov_b32 v13, v9
        v_permlane32_swap_b32 v12, v8
        v_permlane32_swap_b32 v13, v9
        v_pk_add_f32 v[8:9], v[8:9], v[12:13]
        s_mov_b64 exec, 0xff
        global_store_dwordx4 v101, v[8:11], s[30:31] sc1''')
        s.stamp(9)
        a('L_R_end:')
        s.end()
    def aux(s):
        a=s.a
        MK=4; A=8; A2=40; GT=72; DUP=104; B=112; D=120; T=124
        XC=140; LN=141; GA=142; SB=143; CB=144; TBW=145; TBR=146; DDW=147; DDR=148
        a(f'''L_aux:
        s_sub_u32 s44, s35, 24
        s_mul_i32 s45, s34, 7
        s_add_u32 s45, s45, s44
        v_lshrrev_b32 v2, 3, v1
        v_and_b32 v3, 7, v1
        v_lshlrev_b32 v3, 4, v3
        s_waitcnt lgkmcnt(0)
        s_load_dword s32, s[30:31], 0
        s_cmp_eq_u32 s33, 7
        s_cbranch_scc1 L_aux7
        s_lshl_b32 s46, s33, 6
        v_add_u32 v{T}, s46, v1
        v_lshlrev_b32 v{T+1}, 1, v{T}
        global_load_ushort v{XC}, v{T+1}, s[4:5]
        v_min_u32 v{T+1}, 55, v1
        v_lshlrev_b32 v{T+1}, 4, v{T+1}
        global_load_dwordx4 v[{GT}:{GT+3}], v{T+1}, s[4:5]
        s_lshl_b32 s36, s33, 19
        s_lshl_b32 s37, s34, 10
        s_add_u32 s36, s36, s37
        s_lshl_b32 s37, s44, 7
        s_add_u32 s36, s36, s37
        v_lshl_add_u32 v{T+1}, v2, 16, v3
        v_add_u32 v{T+1}, s36, v{T+1}''')
        for i in range(8):
            a(f'global_load_dwordx4 v[{A+4*i}:{A+4*i+3}], v{T+1}, s[10:11] {s.wnt}')
            if i<7: a(f'v_add_u32 v{T+1}, 8192, v{T+1}')
        s.masks(MK)
        a(f'''v_lshlrev_b32 v150, 3, v{T}
        v_add_u32 v150, {WS_H1}, v150
        v_add_u32 v151, 21504, v150
        v_add_u32 v152, 21504, v151
        v_add_u32 v153, 21504, v152
        s_lshl_b32 s36, s33, 8
        v_lshl_add_u32 v{TBW}, v1, 2, s36
        v_lshl_add_u32 v{TBR}, v2, 5, s36
        s_lshl_b32 s36, s33, 10
        v_lshl_add_u32 v{DDW}, v1, 4, s36
        v_lshlrev_b32 v149, 2, v{T}
        s_waitcnt vmcnt(8) lgkmcnt(0)
        s_add_u32 s32, s32, 0x9e3779b9
        v_lshlrev_b32 v{XC}, 16, v{XC}''')
        X=GT+4
        for r in range(4):
            a(f'v_lshlrev_b32 v{X+2*r}, 16, v{GT+r}\nv_and_b32 v{X+2*r+1}, 0xffff0000, v{GT+r}')
        a(f'v_cmp_gt_u32 s[48:49], 56, v1\nv_add_f32 v{T}, v{X}, v{X+1}')
        for r in range(2,8): a(f'v_add_f32 v{T}, v{T}, v{X+r}')
        a(f'v_cndmask_b32 v{T}, 0, v{T}, s[48:49]')
        s.wavesum(T,T+1)
        a(f'v_mul_f32 v{T}, {hex(f2u(1/448))}, v{T}')
        for r in range(8): a(f'v_sub_f32 v{X+r}, v{X+r}, v{T}')
        a(f'v_mul_f32 v{T+2}, v{X}, v{X}')
        for r in range(1,8): a(f'v_fmac_f32 v{T+2}, v{X+r}, v{X+r}')
        a(f'v_cndmask_b32 v{T+2}, 0, v{T+2}, s[48:49]')
        s.wavesum(T+2,T+1)
        a(f'v_mul_f32 v{T+2}, {hex(f2u(1/448))}, v{T+2}')
        s.lnfin(LN,XC,T,T+2,T+3)
        s.stamp(1)
        ld='\n'.join(f'global_load_dwordx2 v[{GT+4*q+2*sec}:{GT+4*q+2*sec+1}], v{150+q}, s[30:31] offset:{3584*sec} sc1' for q in range(4) for sec in range(2))
        s.poll(ld,[GT+2*i+1 for i in range(8)],T)
        s.stamp(2)
        if s.debug: a('s_mov_b32 s90, s42')
        a(f'''v_add_f32 v{T}, v{GT}, v{GT+4}
        v_add_f32 v{T+1}, v{GT+2}, v{GT+6}
        v_add_f32 v{T+2}, v{GT+8}, v{GT+12}
        v_add_f32 v{T+3}, v{GT+10}, v{GT+14}
        v_add_f32 v{T}, v{T}, v{T+2}
        v_add_f32 v{T+1}, v{T+1}, v{T+3}
        v_cvt_pk_bf16_f32 v{T}, v{T}, v{T+1}
        v_and_b32 v{T+1}, 0xffff0000, v{T}
        v_lshlrev_b32 v{T}, 16, v{T}
        v_add_f32 v{T+1}, 1.0, v{T+1}''')
        s.rnd(f'v{T+1}',f'v{T+1}')
        s.modulate_gemv(LN,T+1,T,T+2,TBW,TBR,DDW,DUP,A,MK,B,D)
        s.stamp(3)
        a(f'''s_cmp_eq_u32 s44, 7
        s_cbranch_scc1 L_aux_end''')
        for q in range(4): a(f'v_add_u32 v{150+q}, {3*3584}, v{150+q}\nv_add_u32 v{154+q}, {2*3584}, v{150+q}')
        ld='\n'.join(f'global_load_dwordx2 v[{GT+8*q+2*sec}:{GT+8*q+2*sec+1}], v{150+q}, s[30:31] offset:{3584*(sec-1)} sc1' for q in range(4) for sec in range(3))
        ld+='\n'+'\n'.join(f'global_load_dwordx2 v[{GT+8*q+6}:{GT+8*q+7}], v{154+q}, s[30:31] sc1' for q in range(4))
        s.poll(ld,[GT+2*i+1 for i in range(16)],T)
        s.stamp(4)
        a(f'''v_bfe_u32 v{T}, v1, 2, 1
        v_cmp_eq_u32 vcc, 1, v{T}
        v_mov_b32 v{T+2}, s16
        v_mov_b32 v{T+3}, s17
        v_mov_b32 v{T+4}, s18
        v_mov_b32 v{T+5}, s19
        v_cndmask_b32 v{T+2}, v{T+2}, v{T+4}, vcc
        v_cndmask_b32 v{T+3}, v{T+3}, v{T+5}, vcc
        s_mul_i32 s36, s33, {64*3584}
        s_lshl_b32 s37, s45, 6
        s_add_u32 s36, s36, s37
        s_add_u32 s36, s36, 3584
        v_mul_u32_u24 v{T+4}, {8*3584}, v2
        v_and_b32 v{T+5}, 3, v1
        v_lshlrev_b32 v{T+5}, 4, v{T+5}
        v_add3_u32 v{T+4}, v{T+4}, v{T+5}, s36
        v_mov_b32 v{T+5}, 0
        v_lshl_add_u64 v[{T+2}:{T+3}], v[{T+4}:{T+5}], 0, v[{T+2}:{T+3}]
        s_mov_b64 s[36:37], {3*3584}''')
        for i in range(8):
            a(f'global_load_dwordx4 v[{A+4*i}:{A+4*i+3}], v[{T+2}:{T+3}], off offset:{3584*(i%3-1)} {s.wnt}')
            if i%3==2: a(f'v_lshl_add_u64 v[{T+2}:{T+3}], v[{T+2}:{T+3}], 0, s[36:37]')
        for k,dst in enumerate((GA,SB,CB,T+6)):
            a(f'''v_add_f32 v{T}, v{GT+2*k}, v{GT+8+2*k}
            v_add_f32 v{T+1}, v{GT+16+2*k}, v{GT+24+2*k}
            v_add_f32 v{T}, v{T}, v{T+1}''')
            s.rnd(f'v{dst}',f'v{T}')
        a(f'v_add_f32 v{CB}, 1.0, v{CB}'); s.rnd(f'v{CB}',f'v{CB}')
        a(f'''ds_write_b32 v149, v{T+6} offset:{L_GB}
        s_cmp_lt_u32 s33, 4
        s_cbranch_scc1 L_aux_h4''')
        s.down_loads(A2,T)
        a(f'''L_aux_h4:
        s_lshl_b32 s36, s33, 9
        s_add_u32 s36, s36, {WS_H4+3584}
        v_lshrrev_b32 v{T}, 4, v1
        v_lshl_add_u32 v150, v{T}, 7, v3
        v_add_u32 v150, s36, v150
        v_add_u32 v151, {3*3584}, v150
        v_add_u32 v152, {3*3584}, v151
        v_lshrrev_b32 v{T}, 5, v1
        s_lshl_b32 s36, s33, 2
        v_lshl_add_u32 v153, v{T}, 5, s36
        v_mov_b32 v154, 0
        s_mov_b32 s46, 0xff00ff00
        s_mov_b32 s47, 0xff00ff00''')
        s.stamp(5)
        ld='\n'.join(f'global_load_dwordx4 v[{GT+4*i}:{GT+4*i+3}], v{150+i//3}, s[30:31] offset:{3584*(i%3-1)} sc1' for i in range(8))
        s.poll(ld,[GT+4*i+2 for i in range(8)],T,s.sleep4)
        s.stamp(6)
        if s.debug: a('s_mov_b32 s88, s42')
        P=lambda i:f'v[{GT+4*i}:{GT+4*i+1}]'
        for (x,y) in ((0,1),(2,3),(4,5),(6,7),(0,2),(4,6),(0,4)): a(f'v_pk_add_f32 {P(x)}, {P(x)}, {P(y)}')
        a(f'v_cndmask_b32 v{T}, v{GT}, v{GT+1}, s[46:47]')
        s.rnd(f'v{T}',f'v{T}')
        a(f'v_mul_f32 v{T}, v{GA}, v{T}'); s.rnd(f'v{T}',f'v{T}')
        a(f'v_add_f32 v{T}, v{XC}, v{T}'); s.rnd(f'v{XC}',f'v{T}')
        a(f'v_mul_f32 v{T+1}, v{XC}, v{XC}\nv_add_f32_dpp v{T}, v{XC}, v{XC} row_ror:1 {DPPF}\nv_add_f32_dpp v{T+1}, v{T+1}, v{T+1} row_ror:1 {DPPF}\nds_write_b32 v149, v{XC} offset:{L_X1}')
        for k in (2,4,8): a(f'v_add_f32_dpp v{T}, v{T}, v{T} row_ror:{k} {DPPF}\nv_add_f32_dpp v{T+1}, v{T+1}, v{T+1} row_ror:{k} {DPPF}')
        a(f'v_permlane32_swap_b32 v{T}, v{T+1}\nv_add_f32 v{T}, v{T}, v{T+1}')
        s.bfly('v_add_f32',T,T+1,16)
        a(f'''ds_write_b32 v153, v{T} offset:{L_ST}
        s_waitcnt lgkmcnt(0)
        s_barrier
        ds_read_b128 v[{GT}:{GT+3}], v154 offset:{L_ST}
        ds_read_b128 v[{GT+8}:{GT+11}], v154 offset:{L_ST+32}
        ds_read_b128 v[{GT+4}:{GT+7}], v154 offset:{L_ST+16}
        ds_read_b128 v[{GT+12}:{GT+15}], v154 offset:{L_ST+48}
        s_waitcnt lgkmcnt(0)
        v_pk_add_f32 v[{GT}:{GT+1}], v[{GT}:{GT+1}], v[{GT+2}:{GT+3}]
        v_pk_add_f32 v[{GT+8}:{GT+9}], v[{GT+8}:{GT+9}], v[{GT+10}:{GT+11}]
        v_pk_add_f32 v[{GT}:{GT+1}], v[{GT}:{GT+1}], v[{GT+4}:{GT+5}]
        v_pk_add_f32 v[{GT+8}:{GT+9}], v[{GT+8}:{GT+9}], v[{GT+12}:{GT+13}]
        v_add_f32 v{GT}, v{GT}, v{GT+1}
        v_add_f32 v{GT+8}, v{GT+8}, v{GT+9}
        v_add_f32 v{T}, v{GT}, v{GT+6}
        v_add_f32 v{T+2}, v{GT+8}, v{GT+14}
        v_mul_f32 v{T}, {hex(f2u(1/448))}, v{T}
        v_mul_f32 v{T+2}, {hex(f2u(1/448))}, v{T+2}
        v_fma_f32 v{T+2}, -v{T}, v{T}, v{T+2}
        v_max_f32 v{T+2}, 0, v{T+2}''')
        s.lnfin(LN,XC,T,T+2,T+3)
        s.stamp(7)
        s.modulate_gemv(LN,CB,SB,T+2,TBW,TBR,DDW,DUP,A,MK,B,D)
        s.stamp(8)
        a(f'''s_cmp_ge_u32 s33, 4
        s_cbranch_scc1 L_aux_down
        s_cmp_lg_u32 s33, 0
        s_cbranch_scc1 L_aux_end
        s_bitcmp1_b32 s45, 0
        s_cbranch_scc1 L_aux_end
        s_lshr_b32 s46, s45, 1
        s_lshl_b32 s36, s46, 6
        v_lshrrev_b32 v{T}, 2, v3
        v_add_u32 v{T}, s36, v{T}
        v_add_u32 v{T+1}, {L_GB}, v{T}
        v_add_u32 v{T}, {L_X1}, v{T}
        ds_read2_b32 v[{T+2}:{T+3}], v{T} offset0:0 offset1:8
        ds_read2_b32 v[{T+4}:{T+5}], v{T+1} offset0:0 offset1:8
        s_mul_i32 s36, s46, 7168
        s_add_u32 s36, s36, {WS_H5+3072}
        v_lshl_add_u32 v150, v1, 4, s36
        s_lshl_b32 s36, s46, 5
        v_lshrrev_b32 v151, 3, v3
        v_add_u32 v151, s36, v151
        s_waitcnt lgkmcnt(0)''')
        ld='\n'.join(f'global_load_dwordx4 v[{GT+4*i}:{GT+4*i+3}], v150, s[30:31] offset:{1024*(i-3)} sc1' for i in range(7))
        s.poll(ld,[GT+4*i+2 for i in range(7)],T+6,s.sleep5)
        s.stamp(9)
        if s.debug: a('s_mov_b32 s86, s42')
        for (x,y) in ((0,1),(2,3),(4,5),(0,2),(4,6),(0,4)): a(f'v_pk_add_f32 {P(x)}, {P(x)}, {P(y)}')
        a(f'''v_add_f32_dpp v{GT}, v{GT}, v{GT} row_ror:8 {DPPF}
        v_add_f32_dpp v{GT+1}, v{GT+1}, v{GT+1} row_ror:8 {DPPF}
        v_mov_b32 v{GT+2}, v{GT}
        v_mov_b32 v{GT+3}, v{GT+1}
        v_permlane16_swap_b32 v{GT+2}, v{GT}
        v_permlane16_swap_b32 v{GT+3}, v{GT+1}
        v_pk_add_f32 v[{GT}:{GT+1}], v[{GT}:{GT+1}], v[{GT+2}:{GT+3}]
        v_mov_b32 v{GT+2}, v{GT}
        v_mov_b32 v{GT+3}, v{GT+1}
        v_permlane32_swap_b32 v{GT+2}, v{GT}
        v_permlane32_swap_b32 v{GT+3}, v{GT+1}
        v_pk_add_f32 v[{GT}:{GT+1}], v[{GT}:{GT+1}], v[{GT+2}:{GT+3}]
        v_cvt_pk_bf16_f32 v{GT}, v{GT}, v{GT+1}
        v_and_b32 v{GT+1}, 0xffff0000, v{GT}
        v_lshlrev_b32 v{GT}, 16, v{GT}
        v_pk_mul_f32 v[{GT}:{GT+1}], v[{GT}:{GT+1}], v[{T+4}:{T+5}]
        v_cvt_pk_bf16_f32 v{GT}, v{GT}, v{GT+1}
        v_and_b32 v{GT+1}, 0xffff0000, v{GT}
        v_lshlrev_b32 v{GT}, 16, v{GT}
        v_pk_add_f32 v[{GT}:{GT+1}], v[{GT}:{GT+1}], v[{T+2}:{T+3}]
        v_cvt_pk_bf16_f32 v{GT}, v{GT}, v{GT+1}
        s_mov_b64 exec, 0xff
        global_store_short v151, v{GT}, s[26:27]
        global_store_short_d16_hi v151, v{GT}, s[26:27] offset:16
        s_cmp_lg_u32 s46, 0
        s_cbranch_scc1 L_aux_end
        s_mov_b64 exec, 1
        v_mov_b32 v{T}, 0
        v_mov_b32 v{T+1}, s32
        global_store_dword v{T}, v{T+1}, s[30:31] sc1
        s_branch L_aux_end''')
        a(f'''L_aux7:''')
        s.masks(MK)
        s.ddr_addr(DDR,T)
        a(f'''s_lshl_b32 s36, s34, 11
        s_lshl_b32 s37, s44, 8
        s_add_u32 s36, s36, s37
        s_add_u32 s36, s36, {WS_H2}
        v_lshl_add_u32 v150, v1, 2, s36
        s_waitcnt lgkmcnt(0)
        s_add_u32 s32, s32, 0x9e3779b9
        s_barrier''')
        s.dd_sum(GT,DDR)
        a(f'''v_mov_b32_dpp v{GT+1}, v{GT} quad_perm:[1,1,3,3] {DPPF}
        v_cvt_pk_bf16_f32 v{GT}, v{GT}, v{GT+1}
        v_mov_b32 v{GT+1}, s32
        s_mov_b32 exec_lo, 0x55555555
        s_mov_b32 exec_hi, 0x55555555
        global_store_dwordx2 v150, v[{GT}:{GT+1}], s[30:31] sc1
        s_mov_b64 exec, -1''')
        s.stamp(3)
        a('''s_cmp_eq_u32 s44, 7
        s_cbranch_scc1 L_aux_end''')
        s.down_loads(A2,T)
        a('''s_mov_b32 s46, 0xff00ff00
        s_mov_b32 s47, 0xff00ff00
        s_barrier
        s_barrier
        L_aux_down:''')
        s.dd_sum(GT,DDR)
        s.rnd(f'v{GT}',f'v{GT}')
        a(f'v_mov_b32 v{GT+1}, v{GT}\nv_permlane32_swap_b32 v{GT}, v{GT+1}')
        s.silu(GT,GT,GT+2); s.rnd(f'v{GT}',f'v{GT}')
        a(f'''v_mul_f32 v{GT}, v{GT}, v{GT+1}
        v_cvt_pk_bf16_f32 v{GT}, v{GT}, v{GT}
        ds_write_b32 v160, v{GT}
        ds_read_b128 v[{DUP}:{DUP+3}], v161
        ds_read_b128 v[{DUP+4}:{DUP+7}], v161 offset:16
        s_waitcnt vmcnt(0) lgkmcnt(0)''')
        s.stamp(10)
        s.gemv_steps(D,A2,DUP,8,MK,B)
        a(f'''v_mov_b32 v{T+6}, s32
        v_mov_b32 v{T+7}, s32
        v_cndmask_b32 v{T+4}, v{D}, v{D+2}, s[46:47]
        v_cndmask_b32 v{T+5}, v{D+1}, v{D+3}, s[46:47]
        s_mov_b32 exec_hi, 0x00ffffff
        global_store_dwordx4 v162, v[{T+4}:{T+7}], s[30:31] sc1''')
        s.stamp(11)
        a('L_aux_end:')
        s.end()
    def ddr_addr(s,DDR,T):
        s.a(f'''v_lshrrev_b32 v{DDR}, 5, v1
        v_lshl_add_u32 v{DDR}, v{DDR}, 8, v3
        v_bfe_u32 v{T}, v1, 3, 2
        v_lshl_add_u32 v{DDR}, v{T}, 2, v{DDR}
        v_add_u32 v{DDR}, {L_DD}, v{DDR}''')
        for w in range(1,7): s.a(f'v_add_u32 v{164+w}, {1024*w}, v{DDR}')
    def dd_sum(s,GT,DDR):
        a=s.a
        for w in range(7): a(f'ds_read2_b32 v[{GT+2*w}:{GT+2*w+1}], v{DDR if w==0 else 164+w} offset0:0 offset1:160')
        a('s_waitcnt lgkmcnt(0)')
        P=lambda i:f'v[{GT+2*i}:{GT+2*i+1}]'
        for (x,y) in ((0,1),(2,3),(4,5),(0,2),(4,6),(0,4)): a(f'v_pk_add_f32 {P(x)}, {P(x)}, {P(y)}')
        a(f'v_add_f32 v{GT}, v{GT}, v{GT+1}')
    def down_loads(s,A2,T):
        a=s.a
        a(f'''s_sub_u32 s38, s33, 4
        s_mul_i32 s36, s45, {32*896}
        s_mul_i32 s37, s38, 224
        s_add_u32 s36, s36, s37
        s_add_u32 s36, s36, {3*896}
        v_lshrrev_b32 v{T}, 4, v1
        v_mul_u32_u24 v{T+1}, {8*896}, v{T}
        v_and_b32 v{T+2}, 15, v1
        v_min_u32 v{T+2}, 13, v{T+2}
        v_lshlrev_b32 v{T+2}, 4, v{T+2}
        v_add3_u32 v{T+1}, v{T+1}, v{T+2}, s36''')
        for t in range(8): a(f'global_load_dwordx4 v[{A2+4*t}:{A2+4*t+3}], v{T+1}, s[20:21] offset:{896*(t-3)} {s.wnt}')
        a(f'''s_lshl_b32 s36, s38, 7
        s_add_u32 s36, s36, {L_ACT}
        v_and_b32 v{T+2}, 31, v1
        v_lshl_add_u32 v160, v{T+2}, 2, s36
        v_lshl_add_u32 v161, v{T}, 5, s36
        s_mul_i32 s36, s38, {7*7168}
        s_lshl_b32 s37, s45, 7
        s_add_u32 s36, s36, s37
        s_add_u32 s36, s36, {WS_H5}
        v_mul_u32_u24 v162, 7168, v2
        v_add3_u32 v162, v162, v3, s36''')
        s.ddr_addr(148,T)
    def lnfin(s,LN,X,MU,VAR,t):
        a=s.a
        a(f'''v_cvt_pk_bf16_f32 v{MU}, v{MU}, v{VAR}
        v_and_b32 v{VAR}, 0xffff0000, v{MU}
        v_lshlrev_b32 v{MU}, 16, v{MU}
        v_add_f32 v{VAR}, {hex(f2u(1e-5))}, v{VAR}
        v_sub_f32 v{MU}, v{X}, v{MU}
        v_cvt_pk_bf16_f32 v{MU}, v{MU}, v{VAR}
        v_and_b32 v{VAR}, 0xffff0000, v{MU}
        v_sqrt_f32 v{VAR}, v{VAR}
        v_lshlrev_b32 v{MU}, 16, v{MU}''')
        s.rnd(f'v{VAR}',f'v{VAR}')
        a(f'v_rcp_f32 v{VAR}, v{VAR}\nv_mul_f32 v{LN}, v{MU}, v{VAR}')
        s.rnd(f'v{LN}',f'v{LN}')
    def modulate_gemv(s,LN,SC,SH,t,TBW,TBR,DDW,DUP,A,MK,B,D):
        a=s.a
        a(f'v_mul_f32 v{t}, v{LN}, v{SC}'); s.rnd(f'v{t}',f'v{t}')
        a(f'''v_add_f32 v{t}, v{t}, v{SH}
        v_cvt_pk_bf16_f32 v{t}, v{t}, v{t}
        ds_write_b32 v{TBW}, v{t} offset:{L_TB}
        ds_read_b128 v[{DUP}:{DUP+3}], v{TBR} offset:{L_TB}
        ds_read_b128 v[{DUP+4}:{DUP+7}], v{TBR} offset:{L_TB+16}
        s_waitcnt lgkmcnt(0)''')
        s.gemv_steps(D,A,DUP,8,MK,B)
        a(f'''ds_write_b128 v{DDW}, v[{D}:{D+3}] offset:{L_DD}
        s_waitcnt lgkmcnt(0)
        s_barrier''')
    def build(s):
        s.prologue(); s.awave(); s.rwave(); s.aux()
        s.a('L_exit:\ns_endpgm')
        body=pad(s.a.text())
        hdr=open('cdna_kernels/'+NAME+'.s.ref').read().split('; Override launch')[0]
        return f'''{hdr}; One persistent launch, one 8-wave workgroup per CU. Generated by my own script (work/gen.py).
; @launch grid=(256,1,1) block=(512,1,1) lds=16384
.amdgcn_target "amdgcn-amd-amdhsa--gfx950"
.text
.globl {NAME}_kernel
.p2align 8
.type {NAME}_kernel,@function
{NAME}_kernel:
{body}
.section .rodata,"a"
.p2align 6
.amdhsa_kernel {NAME}_kernel
  .amdhsa_next_free_vgpr 256
  .amdhsa_next_free_sgpr 102
  .amdhsa_accum_offset 256
  .amdhsa_group_segment_fixed_size 0
  .amdhsa_kernarg_size 112
  .amdhsa_user_sgpr_count 2
  .amdhsa_user_sgpr_kernarg_segment_ptr 1
  .amdhsa_system_sgpr_workgroup_id_x 1
  .amdhsa_float_denorm_mode_32 3
.end_amdhsa_kernel
'''
if __name__=='__main__':
    out=sys.argv[1]
    kw={}
    for x in sys.argv[2:]:
        k,v=x.split('=')
        kw[k]=int(v) if v.lstrip('-').isdigit() else v
    open(out,'w').write(G(**kw).build())
```

```python
import sys
from asmgen import Asm, NAME
from hazard import pad

STAMP_OFF=200*1024*1024
WS_XT =0x400
WS_H2 =0x1000
WS_H4 =0x8000
WS_H1 =0x10000
WS_H5 =0x28000
WS_H35=0x60000
WS_H3 =0xD0000
L_Q=0; L_MX=1024; L_LS=1056; L_FLAG=1088; L_P=2048; L_MT=10240; L_MD=11264
L_TB=0; L_DD=2048; L_ST=9216; L_X1=9344; L_GB=11136; L_ACT=12928
LOG2E=1.4426950408889634
import struct
def f2u(x): return struct.unpack('<I',struct.pack('<f',x))[0]
DPPF='row_mask:0xf bank_mask:0xf'

class G:
    DBG=[(0*8+4,0,[0,1,2,3,6]),(0*8+1,5,[1,2]),(0*8+0,7,[4,6,7,9]),(192*8+0,11,[0,1,2,3,4,5,6,7,8,9,15]),(192*8+7,22,[3,10,11]),(7*8+4,25,[0,2,6]),(199*8+0,28,[0,6]),(241*8+0,30,[0,15])]
    def __init__(s, debug=False, win=3, nt='nt', local=True, limit=200000, prefetch=True, prewarm=True, wnt='nt', sleep4=0, sleep5=0, sleep3=0, sleepq=0, dbgout=0):
        s.a=Asm(); s.debug=debug; s.win=win; s.nt=nt; s.local=local; s.limit=limit; s.prefetch=prefetch; s.prewarm=prewarm
        s.dbgout=dbgout; s.wnt=wnt; s.sleep4=sleep4; s.sleep5=sleep5; s.sleep3=sleep3; s.sleepq=sleepq
    def stamp(s,i):
        if s.debug: s.a(f's_memrealtime s[{64+2*i}:{65+2*i}]')
    def end(s):
        a=s.a
        if s.debug:
            a('s_memrealtime s[94:95]\ns_waitcnt lgkmcnt(0)\ns_mov_b64 exec, -1\nv_mov_b32 v2, 0')
            for i in range(16): a(f'v_writelane_b32 v2, s{64+2*i}, {i}')
            a(f'''s_lshl_b32 s36, s2, 3
            s_add_u32 s36, s36, s33
            s_lshl_b32 s36, s36, 6
            s_add_u32 s36, s36, {STAMP_OFF}
            v_lshl_add_u32 v3, v1, 2, s36
            s_mov_b64 exec, 0xffff
            global_store_dword v3, v2, s[30:31]''')
            if s.dbgout:
                for key,first,idx in s.DBG:
                    l=a.label('dbg')
                    a(f's_lshl_b32 s36, s2, 3\ns_add_u32 s36, s36, s33\ns_cmp_lg_u32 s36, {key}\ns_cbranch_scc1 {l}\ns_mov_b64 exec, 1')
                    for n,i in enumerate(idx):
                        a(f'v_mov_b32 v2, s{64+2*i}\nv_mov_b32 v3, {2*(first+n)}\nglobal_store_short v3, v2, s[28:29]')
                    a(f'{l}:')
        a('s_endpgm')
    def rnd(s,dst,src,tmp=None):
        t=tmp or dst
        s.a(f'v_cvt_pk_bf16_f32 {t}, {src}, {src}\nv_and_b32 {dst}, 0xffff0000, {t}')
    def masks(s,r):
        a=s.a
        a(f'''v_and_b32 v{r}, 1, v1
        v_lshlrev_b32 v{r}, 4, v{r}
        v_mov_b32 v{r+1}, 0xffff
        v_lshlrev_b32 v{r+3}, v{r}, v{r+1}
        v_bfe_u32 v{r}, v1, 1, 2
        v_cmp_eq_u32 vcc, 1, v{r}
        v_cmp_eq_u32 s[36:37], 2, v{r}
        v_cmp_eq_u32 s[38:39], 3, v{r}
        v_cmp_eq_u32 s[40:41], 0, v{r}
        v_cndmask_b32 v{r+1}, 0, v{r+3}, vcc
        v_cndmask_b32 v{r+2}, 0, v{r+3}, s[36:37]
        v_cndmask_b32 v{r}, 0, v{r+3}, s[40:41]
        v_cndmask_b32 v{r+3}, 0, v{r+3}, s[38:39]''')
    def tagcheck(s,tags,t,pre=None):
        a=s.a; outs=[]; i=0; k=t
        while i<len(tags):
            if i+1<len(tags): a(f'v_bitop3_b32 v{k}, v{tags[i]}, v{tags[i+1]}, s32 bitop3:0x7e'); i+=2
            else: a(f'v_xor_b32 v{k}, s32, v{tags[i]}'); i+=1
            outs.append(k); k+=1
        while len(outs)>1:
            if len(outs)>=3: a(f'v_or3_b32 v{outs[0]}, v{outs[0]}, v{outs[1]}, v{outs[2]}'); outs=[outs[0]]+outs[3:]
            else: a(f'v_or_b32 v{outs[0]}, v{outs[0]}, v{outs[1]}'); outs=[outs[0]]
        a(f'v_cmp_ne_u32 vcc, 0, v{outs[0]}')
    def poll(s,loads,tags,t,sleep=0):
        a=s.a; lp=a.label('poll'); dn=a.label('pdone')
        a(f's_mov_b32 s42, 0\n{lp}:')
        a(loads); a('s_waitcnt vmcnt(0)')
        s.tagcheck(tags,t)
        a(f's_cbranch_vccz {dn}')
        if sleep: a(f's_sleep {sleep}')
        a(f's_add_u32 s42, s42, 1\ns_cmp_lt_u32 s42, {s.limit}\ns_cbranch_scc1 {lp}\n{dn}:')
    def gemv_steps(s,D,A,dup,n,mk,B,dpp=None):
        a=s.a
        for i in range(n):
            b=B+4*(i&1)
            for r in range(4):
                if dpp: a(f'v_and_b32_dpp v{b+r}, v{dpp(i)[0]}, v{mk+r} quad_perm:[{dpp(i)[1]},{dpp(i)[1]},{dpp(i)[1]},{dpp(i)[1]}] {DPPF}')
                else: a(f'v_and_b32 v{b+r}, v{dup+i}, v{mk+r}')
            if i>0:
                j=i-1; bj=B+4*(j&1)
                a(f'v_mfma_f32_16x16x32_bf16 v[{D}:{D+3}], v[{A+4*j}:{A+4*j+3}], v[{bj}:{bj+3}], {"0" if j==0 else f"v[{D}:{D+3}]"}')
        j=n-1; bj=B+4*(j&1)
        a(f'v_mfma_f32_16x16x32_bf16 v[{D}:{D+3}], v[{A+4*j}:{A+4*j+3}], v[{bj}:{bj+3}], v[{D}:{D+3}]')
    def bfly(s,op,v,t,which):
        s.a(f'v_mov_b32 v{t}, v{v}\nv_permlane{which}_swap_b32 v{t}, v{v}\n{op} v{v}, v{v}, v{t}')
    def wavesum(s,v,t):
        for k in (1,2,4,8): s.a(f'v_add_f32_dpp v{v}, v{v}, v{v} row_ror:{k} {DPPF}')
        s.bfly('v_add_f32',v,t,16); s.bfly('v_add_f32',v,t,32)
    def silu(s,dst,x,t):
        s.a(f'''v_mul_f32 v{t}, {hex(f2u(-LOG2E))}, v{x}
        v_exp_f32 v{t}, v{t}
        v_add_f32 v{t}, 1.0, v{t}
        v_rcp_f32 v{t}, v{t}
        v_mul_f32 v{dst}, v{x}, v{t}''')
    def store2(s,ins):
        a=s.a
        if not s.local: a(ins+' sc1'); return
        l1=a.label('st'); l2=a.label('st')
        a(f's_cmp_eq_u32 s43, 0\ns_cbranch_scc1 {l1}\n{ins}\ns_branch {l2}\n{l1}:\n{ins} sc1\n{l2}:')

    def prologue(s):
        a=s.a
        if s.debug:
            for i in range(64,96,2): a(f's_mov_b64 s[{i}:{i+1}], 0')
        s.stamp(0)
        a('''s_cmp_ge_u32 s2, 256
        s_cbranch_scc1 L_exit
        s_load_dwordx4 s[28:31], s[0:1], 96
        s_load_dwordx16 s[4:19], s[0:1], 0
        s_load_dwordx8 s[20:27], s[0:1], 64
        v_lshrrev_b32 v2, 6, v0
        v_and_b32 v1, 63, v0
        s_and_b32 s34, s2, 7
        s_lshr_b32 s35, s2, 3
        v_readfirstlane_b32 s33, v2
        s_cmp_ge_u32 s35, 24
        s_cbranch_scc1 L_aux
        s_cmp_ge_u32 s33, 4
        s_cbranch_scc0 L_R''')
    def awave(s):
        a=s.a; NG=11
        K=8; V=K+8*NG; D=V+8*NG
        S=200; Q=212; MK=220; O=224; T=232
        vK=2; vV=3
        a(f'''; ---------------- attention wave ----------------
        s_sub_u32 s44, s33, 4
        s_mul_i32 s36, s44, 24
        s_add_u32 s45, s36, s35
        s_lshl_b32 s37, s34, 23
        s_lshl_b32 s38, s45, 11
        s_add_u32 s37, s37, s38
        s_add_u32 s37, s37, {12288*512}
        v_lshrrev_b32 v4, 4, v1
        v_and_b32 v5, 15, v1
        v_lshlrev_b32 v{vV}, 9, v4
        v_lshl_add_u32 v{vV}, v5, 4, v{vV}
        v_and_b32 v6, 3, v1
        v_lshlrev_b32 v6, 4, v6
        v_lshl_add_u32 v6, v4, 6, v6
        v_lshrrev_b32 v5, 2, v5
        v_lshl_add_u32 v{vK}, v5, 9, v6
        s_waitcnt lgkmcnt(0)
        s_add_u32 s6, s6, s37
        s_addc_u32 s7, s7, 0
        s_add_u32 s8, s8, s37
        s_addc_u32 s9, s9, 0
        s_load_dword s32, s[30:31], 0''')
        n=[0]
        def pair(reg,voff,base):
            if n[0]>=s.win: a(f's_waitcnt vmcnt({2*(s.win-1)})')
            a(f'global_load_dwordx4 v[{reg}:{reg+3}], v{voff}, {base} {s.nt}')
            a(f'global_load_dwordx4 v[{reg+4}:{reg+7}], v{voff}, {base} offset:256 {s.nt}')
            n[0]+=1
        for (R,vo,base,nm) in ((K,vK,'s[6:7]','K'),(V,vV,'s[8:9]','V')):
            sk=a.label('skip')
            a(f's_cmp_ge_u32 s45, 64\ns_cbranch_scc1 {sk}\nv_add_u32 v7, {10*196608}, v{vo}')
            pair(R+80,7,base)
            a(f'{sk}:')
            for i in range(10):
                pair(R+8*i,vo,base)
                if i<9: a(f'v_add_u32 v{vo}, {196608}, v{vo}')
                if nm=='K' and i==2:
                    s.masks(MK)
                    sk2=a.label('z')
                    a(f's_cmp_lt_u32 s45, 64\ns_cbranch_scc1 {sk2}')
                    for r in range(8): a(f'v_mov_b32 v{V+80+r}, 0')
                    a(f'{sk2}:')
                    a(f'''v_bfe_u32 v5, v1, 3, 1
                    v_lshl_add_u32 v{T+8}, v5, 9, v6
                    s_lshl_b32 s36, s44, 2
                    v_lshl_add_u32 v{T+9}, v5, 4, s36
                    v_lshlrev_b32 v{T+10}, 4, v5
                    s_lshl_b32 s36, s44, 11
                    s_add_u32 s36, s36, {L_P}
                    v_lshl_add_u32 v{T+11}, v1, 4, s36
                    s_and_b32 s36, s44, 1
                    s_lshl_b32 s36, s36, 10
                    s_lshr_b32 s46, s44, 1
                    s_lshl_b32 s37, s46, 7
                    s_add_u32 s36, s36, s37
                    s_add_u32 s36, s36, {L_P}
                    v_and_b32 v5, 15, v1
                    v_lshl_add_u32 v{T+12}, v5, 3, s36
                    v_lshl_add_u32 v{T+12}, v4, 8, v{T+12}
                    s_lshl_b32 s36, s34, 4
                    s_lshl_b32 s37, s44, 2
                    s_add_u32 s36, s36, s37
                    s_mul_i32 s36, s36, 6144
                    s_lshl_b32 s37, s35, 8
                    s_add_u32 s36, s36, s37
                    s_add_u32 s36, s36, {WS_H3}
                    v_mul_u32_u24 v{T+13}, 6144, v4
                    v_lshl_add_u32 v{T+13}, v5, 4, v{T+13}
                    v_add_u32 v{T+13}, s36, v{T+13}
                    s_lshl_b32 s36, s46, 4
                    v_mov_b32 v{T+14}, s36
                    s_waitcnt lgkmcnt(0)
                    s_add_u32 s32, s32, 0x9e3779b9''')
            if nm=='K':
                s.stamp(1); a('s_barrier')
        s.stamp(2)
        a('s_barrier')
        s.stamp(3)
        a(f'''ds_read_b128 v[{Q}:{Q+3}], v{T+8} offset:{L_Q}
        ds_read_b128 v[{Q+4}:{Q+7}], v{T+8} offset:{L_Q+256}
        v_mov_b32 v{T}, 0
        ds_read_b32 v{T+1}, v{T} offset:{L_FLAG}
        s_waitcnt lgkmcnt(0)
        v_readfirstlane_b32 s43, v{T+1}''')
        def diag(i):
            d=D+4*(i%4)
            a(f'''v_mov_b32_dpp v{S+i}, v{d} quad_perm:[0,0,0,0] {DPPF}
            v_add_f32_dpp v{S+i}, v{d+1}, v{S+i} quad_perm:[1,1,1,1] {DPPF}
            v_add_f32_dpp v{S+i}, v{d+2}, v{S+i} quad_perm:[2,2,2,2] {DPPF}
            v_add_f32_dpp v{S+i}, v{d+3}, v{S+i} quad_perm:[3,3,3,3] {DPPF}''')
        for i in range(NG):
            d=D+4*(i%4)
            a(f'v_mfma_f32_16x16x32_bf16 v[{d}:{d+3}], v[{K+8*i}:{K+8*i+3}], v[{Q}:{Q+3}], 0')
            a(f'v_mfma_f32_16x16x32_bf16 v[{d}:{d+3}], v[{K+8*i+4}:{K+8*i+7}], v[{Q+4}:{Q+7}], v[{d}:{d+3}]')
            if i>=2: diag(i-2)
        diag(NG-2); diag(NG-1)
        sk=a.label('inf')
        a(f's_cmp_lt_u32 s45, 64\ns_cbranch_scc1 {sk}\nv_mov_b32 v{S+10}, 0xff800000\n{sk}:')
        for i in range(0,NG,2):
            j=min(i+1,NG-1)
            a(f'v_cvt_pk_bf16_f32 v{T}, v{S+i}, v{S+j}\nv_lshlrev_b32 v{S+i}, 16, v{T}')
            if j!=i: a(f'v_and_b32 v{S+j}, 0xffff0000, v{T}')
        a(f'''v_max3_f32 v{T}, v{S}, v{S+1}, v{S+2}
        v_max3_f32 v{T+1}, v{S+3}, v{S+4}, v{S+5}
        v_max3_f32 v{T+2}, v{S+6}, v{S+7}, v{S+8}
        v_max3_f32 v{T}, v{T}, v{S+9}, v{S+10}
        v_max3_f32 v{T}, v{T}, v{T+1}, v{T+2}''')
        s.bfly('v_max_f32',T,T+1,16); s.bfly('v_max_f32',T,T+1,32)
        a(f'''ds_write_b32 v{T+9}, v{T} offset:{L_MX}
        s_waitcnt lgkmcnt(0)
        s_barrier
        ds_read_b128 v[{T}:{T+3}], v{T+10} offset:{L_MX}
        s_mov_b32 s47, {hex(f2u(LOG2E/16))}
        s_waitcnt lgkmcnt(0)
        v_max3_f32 v{T}, v{T}, v{T+1}, v{T+2}
        v_max_f32 v{T}, v{T}, v{T+3}
        v_mul_f32 v{T}, s47, v{T}''')
        for i in range(NG): a(f'v_fma_f32 v{S+i}, v{S+i}, s47, -v{T}')
        for i in range(NG): a(f'v_exp_f32 v{S+i}, v{S+i}')
        a(f'v_readlane_b32 s48, v{T}, 0\nv_readlane_b32 s49, v{T}, 8')
        B=K
        order=[10]+list(range(10))
        for i in order:
            a(f'v_cvt_pk_bf16_f32 v{T+1}, v{S+i}, v{S+i}')
            for r in range(4): a(f'v_and_b32 v{B+4*i+r}, v{T+1}, v{MK+r}')
        a(f'''v_add_f32 v{T+2}, v{S}, v{S+1}''')
        for i in range(2,NG): a(f'v_add_f32 v{T+2}, v{T+2}, v{S+i}')
        s.bfly('v_add_f32',T+2,T+3,16); s.bfly('v_add_f32',T+2,T+3,32)
        a(f'''ds_write_b32 v{T+9}, v{T+2} offset:{L_LS}
        s_cmp_eq_u32 s46, 0
        s_cselect_b32 s48, s48, s49''')
        s.stamp(4)
        for n_,i in enumerate(order):
            left=NG-1-n_
            if left==s.win-1 or left<s.win-1: a(f's_waitcnt vmcnt({2*left})')
            c0='0' if n_==0 else f'v[{O}:{O+3}]'; c1='0' if n_==0 else f'v[{O+4}:{O+7}]'
            a(f'v_mfma_f32_16x16x32_bf16 v[{O}:{O+3}], v[{V+8*i}:{V+8*i+3}], v[{B+4*i}:{B+4*i+3}], {c0}')
            a(f'v_mfma_f32_16x16x32_bf16 v[{O+4}:{O+7}], v[{V+8*i+4}:{V+8*i+7}], v[{B+4*i}:{B+4*i+3}], {c1}')
        s.stamp(5)
        a(f'''ds_write_b128 v{T+11}, v[{O}:{O+3}]
        ds_write_b128 v{T+11}, v[{O+4}:{O+7}] offset:1024
        s_waitcnt lgkmcnt(0)
        s_barrier
        ds_read_b128 v[8:11], v{T+14} offset:{L_LS}
        ds_read_b64 v[12:13], v{T+12}
        ds_read_b64 v[14:15], v{T+12} offset:2048
        ds_read_b64 v[16:17], v{T+12} offset:4096
        ds_read_b64 v[18:19], v{T+12} offset:6144
        v_mov_b32 v23, s32''')
        a('s_waitcnt lgkmcnt(0)' if s.debug else 's_waitcnt lgkmcnt(4)')
        a(f'''v_add_f32 v8, v8, v9
        v_add_f32 v10, v10, v11
        v_add_f32 v8, v8, v10
        v_rcp_f32 v9, v8
        v_log_f32 v10, v8
        s_waitcnt lgkmcnt(0)
        v_pk_add_f32 v[12:13], v[12:13], v[14:15]
        v_pk_add_f32 v[16:17], v[16:17], v[18:19]
        v_add_f32 v22, s48, v10
        v_pk_add_f32 v[12:13], v[12:13], v[16:17]
        v_mul_f32 v20, v12, v9
        v_mul_f32 v21, v13, v9''')
        s.store2(f'global_store_dwordx4 v{T+13}, v[20:23], s[30:31]')
        s.stamp(6)
        s.end()
    def rwave(s):
        a=s.a
        MK=4; A=8; DUP=64; B=80; D=88; T=92
        a(f'''L_R:
        s_waitcnt lgkmcnt(0)
        s_load_dword s32, s[30:31], 0
        s_cmp_eq_u32 s33, 1
        s_cbranch_scc0 L_R_notm
        s_cmp_lt_u32 s35, 21
        s_cbranch_scc0 L_R_notm
        s_mul_i32 s36, s34, 21
        s_add_u32 s36, s36, s35
        s_lshr_b32 s44, s36, 2
        s_and_b32 s45, s36, 3
        v_min_u32 v2, 55, v1
        s_mul_i32 s37, s45, 224
        v_lshl_add_u32 v3, v2, 2, s37
        global_load_dword v{T}, v3, s[22:23]
        s_mul_i32 s37, s45, {112*5376}
        s_lshl_b32 s38, s44, 7
        s_add_u32 s37, s37, s38
        v_lshrrev_b32 v{T+1}, 3, v1
        v_mul_u32_u24 v3, {14*5376}, v{T+1}
        v_and_b32 v{T+2}, 7, v1
        v_lshlrev_b32 v{T+2}, 4, v{T+2}
        v_add3_u32 v3, v3, v{T+2}, s37''')
        for i in range(14):
            a(f'global_load_dwordx4 v[{A+4*i}:{A+4*i+3}], v3, s[24:25] {s.wnt}')
            if i<13: a('v_add_u32 v3, 5376, v3')
        s.masks(MK)
        a(f'''v_mul_u32_u24 v3, 37, v2
        v_lshrrev_b32 v3, 8, v3
        v_mul_u32_u24 v{T+3}, 7, v3
        v_sub_u32 v{T+3}, v2, v{T+3}
        v_lshlrev_b32 v{T+3}, 3, v{T+3}
        v_lshl_add_u32 v3, v3, 6, v{T+3}
        v_lshlrev_b32 v{T+1}, 6, v{T+1}
        v_lshlrev_b32 v{T+8}, 4, v1
        v_lshrrev_b32 v{T+9}, 5, v1
        v_lshl_add_u32 v{T+9}, v{T+9}, 8, v{T+2}
        v_bfe_u32 v{T+10}, v1, 3, 2
        v_lshl_add_u32 v{T+9}, v{T+10}, 2, v{T+9}
        v_add_u32 v{T+9}, {L_MD}, v{T+9}
        s_mul_i32 s37, s45, 21504
        s_lshl_b32 s38, s44, 9
        s_add_u32 s37, s37, s38
        s_add_u32 s37, s37, {WS_H1}
        v_lshl_add_u32 v{T+10}, v1, 3, s37
        s_waitcnt vmcnt(14) lgkmcnt(0)
        s_add_u32 s32, s32, 0x9e3779b9
        v_lshlrev_b32 v{T+4}, 16, v{T}
        v_and_b32 v{T+5}, 0xffff0000, v{T}''')
        s.silu(T+4,T+4,T+6); s.silu(T+5,T+5,T+7)
        a(f'''v_cvt_pk_bf16_f32 v{T+4}, v{T+4}, v{T+4}
        v_cvt_pk_bf16_f32 v{T+5}, v{T+5}, v{T+5}
        ds_write_b64 v3, v[{T+4}:{T+5}] offset:{L_MT}
        ds_read_b128 v[{DUP}:{DUP+3}], v{T+1} offset:{L_MT}
        ds_read_b128 v[{DUP+4}:{DUP+7}], v{T+1} offset:{L_MT+16}
        ds_read_b128 v[{DUP+8}:{DUP+11}], v{T+1} offset:{L_MT+32}
        ds_read_b64 v[{DUP+12}:{DUP+13}], v{T+1} offset:{L_MT+48}
        s_waitcnt vmcnt(0) lgkmcnt(0)''')
        s.stamp(1)
        s.gemv_steps(D,A,DUP,14,MK,B)
        a(f'''ds_write_b128 v{T+8}, v[{D}:{D+3}] offset:{L_MD}
        ds_read2_b32 v[{T+4}:{T+5}], v{T+9} offset0:0 offset1:160
        s_waitcnt lgkmcnt(0)
        v_add_f32 v{T+4}, v{T+4}, v{T+5}
        v_mov_b32 v{T+5}, s32
        global_store_dwordx2 v{T+10}, v[{T+4}:{T+5}], s[30:31] sc1''')
        s.stamp(2)
        a('s_branch L_R_x0\nL_R_notm:')
        a('s_waitcnt lgkmcnt(0)\ns_add_u32 s32, s32, 0x9e3779b9')
        if s.prefetch:
            a(f'''s_cmp_eq_u32 s33, 2
            s_cbranch_scc0 L_R_nopf
            s_getpc_b64 s[36:37]
            L_pc:
            s_sub_u32 s36, s36, L_pc-{NAME}_kernel
            s_subb_u32 s37, s37, 0
            s_and_b32 s38, s35, 3
            s_lshl_b32 s38, s38, 12
            v_lshl_add_u32 v2, v1, 6, s38
            v_min_u32 v2, L_exit-{NAME}_kernel, v2
            global_load_dword v3, v2, s[36:37]
            L_R_nopf:''')
        a(f'''s_cmp_eq_u32 s33, 0
        s_cbranch_scc0 L_R_x0
        s_getreg_b32 s44, hwreg(HW_REG_XCC_ID, 0, 4)
        s_lshl_b32 s36, s34, 8
        s_lshl_b32 s37, s35, 3
        s_add_u32 s37, s37, s36
        s_add_u32 s37, s37, {WS_XT}
        v_mov_b32 v2, s37
        v_mov_b32 v4, s44
        v_mov_b32 v5, s32
        s_mov_b64 exec, 1
        global_store_dwordx2 v2, v[4:5], s[30:31] sc1
        s_mov_b64 exec, -1
        s_add_u32 s36, s36, {WS_XT}
        v_min_u32 v2, 23, v1
        v_lshl_add_u32 v2, v2, 3, s36
        s_lshl_b32 s36, s34, 11
        s_add_u32 s36, s36, {WS_H2}
        v_lshl_add_u32 v3, v1, 4, s36
        v_lshlrev_b32 v6, 3, v1
        s_barrier''')
        s.stamp(3)
        s.poll('''global_load_dwordx4 v[8:11], v3, s[30:31] sc1
        global_load_dwordx4 v[12:15], v3, s[30:31] offset:1024 sc1
        global_load_dwordx2 v[16:17], v2, s[30:31] sc1''',[9,11,13,15,17],20,s.sleepq)
        a(f'''v_cmp_ne_u32 vcc, s44, v16
        v_mov_b32 v9, v10
        v_mov_b32 v13, v14
        s_cmp_eq_u64 vcc, 0
        s_cselect_b32 s43, 1, 0
        ds_write_b64 v6, v[8:9] offset:{L_Q}
        ds_write_b64 v6, v[12:13] offset:{L_Q+512}
        v_mov_b32 v7, s43
        v_mov_b32 v8, 0
        ds_write_b32 v8, v7 offset:{L_FLAG}
        s_waitcnt lgkmcnt(0)''')
        s.stamp(4)
        if s.debug: a('s_mov_b32 s90, s42\ns_mov_b32 s92, s43')
        a('''s_branch L_R_x
        L_R_x0:
        s_cmp_ge_u32 s35, 16
        s_cbranch_scc1 L_R_end
        s_barrier
        L_R_x:
        s_barrier
        s_cmp_ge_u32 s35, 16
        s_cbranch_scc1 L_R_end''')
        A=8; G3=40; T=64; B=80; D=88
        a(f'''; ---------------- output projection: 32 rows x 112 columns of wo per wave ----------------
        s_lshl_b32 s36, s34, 9
        s_lshl_b32 s37, s35, 5
        s_add_u32 s36, s36, s37
        s_mul_i32 s36, s36, 896
        s_mul_i32 s37, s33, 224
        s_add_u32 s36, s36, s37
        v_lshrrev_b32 v2, 4, v1
        v_and_b32 v3, 15, v1
        v_min_u32 v3, 13, v3
        v_mul_u32_u24 v{T}, 1792, v2
        v_lshl_add_u32 v3, v3, 4, s36
        v_add_u32 v3, v3, v{T}''')
        for k in range(4):
            a(f'global_load_dwordx4 v[{A+4*k}:{A+4*k+3}], v3, s[12:13] {s.wnt}')
            a(f'global_load_dwordx4 v[{A+16+4*k}:{A+16+4*k+3}], v3, s[12:13] offset:896 {s.wnt}')
            if k<3: a('v_add_u32 v3, 7168, v3')
        a(f'v_mov_b32 v{T}, 0\nds_read_b32 v{T+1}, v{T} offset:{L_FLAG}')
        s.masks(MK)
        a(f'''s_lshl_b32 s36, s34, 4
        s_add_u32 s36, s36, s35
        s_mul_i32 s36, s36, 6144
        s_add_u32 s36, s36, {WS_H3+2048}
        v_bfe_u32 v3, v1, 2, 2
        v_lshlrev_b32 v3, 8, v3
        v_lshl_add_u32 v3, v2, 6, v3
        v_and_b32 v2, 3, v1
        v_lshl_add_u32 v3, v2, 4, v3
        v_add_u32 v3, s36, v3
        s_mul_i32 s36, s34, 57344
        s_add_u32 s44, s36, {WS_H35}
        s_mul_i32 s37, s33, {7*2048}
        s_lshl_b32 s38, s35, 7
        s_add_u32 s36, s44, s37
        s_add_u32 s36, s36, s38
        v_lshrrev_b32 v2, 3, v1
        v_lshlrev_b32 v2, 11, v2
        v_and_b32 v{T+2}, 7, v1
        v_lshl_add_u32 v2, v{T+2}, 4, v2
        v_add_u32 v2, s36, v2
        s_lshl_b32 s36, s35, 1
        s_add_u32 s45, s36, s33
        s_lshl_b32 s36, s45, 11
        s_add_u32 s36, s36, s44
        v_lshl_add_u32 v100, v1, 4, s36
        s_mul_i32 s36, s34, 3584
        s_lshl_b32 s37, s45, 7
        s_add_u32 s36, s36, s37
        s_add_u32 s36, s36, {WS_H4}
        v_lshl_add_u32 v101, v1, 4, s36
        s_mov_b32 s46, 0xff00ff00
        s_mov_b32 s47, 0xff00ff00
        s_waitcnt lgkmcnt(0)
        v_readfirstlane_b32 s43, v{T+1}
        s_barrier
        s_barrier''')
        s.stamp(5)
        s.poll('\n'.join(f'global_load_dwordx4 v[{G3+4*k}:{G3+4*k+3}], v3, s[30:31] offset:{1024*k-2048} sc1' for k in range(6)),[G3+4*k+3 for k in range(6)],T,s.sleep3)
        s.stamp(6)
        if s.debug: a('s_mov_b32 s88, s42')
        L=lambda k:G3+4*k+2
        a(f'''v_max3_f32 v{T}, v{L(0)}, v{L(1)}, v{L(2)}
        v_max3_f32 v{T+1}, v{L(3)}, v{L(4)}, v{L(5)}
        v_max_f32 v{T}, v{T}, v{T+1}
        v_max_f32_dpp v{T}, v{T}, v{T} row_ror:4 {DPPF}
        v_max_f32_dpp v{T}, v{T}, v{T} row_ror:8 {DPPF}''')
        for k in range(6): a(f'v_sub_f32 v{L(k)}, v{L(k)}, v{T}')
        for k in range(6): a(f'v_exp_f32 v{L(k)}, v{L(k)}')
        a(f'v_mul_f32 v{T+2}, v{G3}, v{L(0)}\nv_mul_f32 v{T+3}, v{G3+1}, v{L(0)}\nv_add_f32 v{T+1}, v{L(0)}, v{L(1)}')
        for k in range(1,6):
            a(f'v_fmac_f32 v{T+2}, v{G3+4*k}, v{L(k)}\nv_fmac_f32 v{T+3}, v{G3+4*k+1}, v{L(k)}')
            if k<5: a(f'v_add_f32 v{T+1}, v{T+1}, v{L(k+1)}')
        for k in (4,8):
            for r in (1,2,3): a(f'v_add_f32_dpp v{T+r}, v{T+r}, v{T+r} row_ror:{k} {DPPF}')
        a(f'''v_rcp_f32 v{T+1}, v{T+1}
        v_mul_f32 v{T+2}, v{T+2}, v{T+1}
        v_mul_f32 v{T+3}, v{T+3}, v{T+1}
        v_cvt_pk_bf16_f32 v{T+2}, v{T+2}, v{T+2}
        v_cvt_pk_bf16_f32 v{T+3}, v{T+3}, v{T+3}''')
        s.gemv_steps(D,A,None,8,MK,B,dpp=lambda k:(T+2+(k&1),k>>1))
        a(f'''v_mov_b32 v{T+6}, s32
        v_mov_b32 v{T+7}, s32
        v_cndmask_b32 v{T+4}, v{D}, v{D+2}, s[46:47]
        v_cndmask_b32 v{T+5}, v{D+1}, v{D+3}, s[46:47]
        s_mov_b32 exec_hi, 0x00ffffff''')
        s.store2(f'global_store_dwordx4 v2, v[{T+4}:{T+7}], s[30:31]')
        a('s_mov_b32 exec_hi, -1')
        s.stamp(7)
        a('''s_cmp_ge_u32 s33, 2
        s_cbranch_scc1 L_R_end
        s_cmp_ge_u32 s35, 14
        s_cbranch_scc1 L_R_end''')
        s.poll('global_load_dwordx4 v[8:11], v100, s[30:31] sc1\nglobal_load_dwordx4 v[12:15], v100, s[30:31] offset:1024 sc1',[10,14],16,s.sleep3)
        s.stamp(8)
        if s.debug: a('s_mov_b32 s86, s42')
        a(f'''v_pk_add_f32 v[8:9], v[8:9], v[12:13]
        v_add_f32_dpp v8, v8, v8 row_ror:8 {DPPF}
        v_add_f32_dpp v9, v9, v9 row_ror:8 {DPPF}
        v_mov_b32 v12, v8
        v_mov_b32 v13, v9
        v_permlane16_swap_b32 v12, v8
        v_permlane16_swap_b32 v13, v9
        v_pk_add_f32 v[8:9], v[8:9], v[12:13]
        v_mov_b32 v12, v8
        v_mov_b32 v13, v9
        v_permlane32_swap_b32 v12, v8
        v_permlane32_swap_b32 v13, v9
        v_pk_add_f32 v[8:9], v[8:9], v[12:13]
        s_mov_b64 exec, 0xff
        global_store_dwordx4 v101, v[8:11], s[30:31] sc1''')
        s.stamp(9)
        a('L_R_end:')
        s.end()
    def aux(s):
        a=s.a
        MK=4; A=8; A2=40; GT=72; DUP=104; B=112; D=120; T=124
        XC=140; LN=141; GA=142; SB=143; CB=144; TBW=145; TBR=146; DDW=147; DDR=148
        a(f'''L_aux:
        s_sub_u32 s44, s35, 24
        s_mul_i32 s45, s34, 7
        s_add_u32 s45, s45, s44
        v_lshrrev_b32 v2, 3, v1
        v_and_b32 v3, 7, v1
        v_lshlrev_b32 v3, 4, v3
        s_waitcnt lgkmcnt(0)
        s_load_dword s32, s[30:31], 0
        s_cmp_eq_u32 s33, 7
        s_cbranch_scc1 L_aux7
        s_lshl_b32 s46, s33, 6
        v_add_u32 v{T}, s46, v1
        v_lshlrev_b32 v{T+1}, 1, v{T}
        global_load_ushort v{XC}, v{T+1}, s[4:5]
        v_min_u32 v{T+1}, 55, v1
        v_lshlrev_b32 v{T+1}, 4, v{T+1}
        global_load_dwordx4 v[{GT}:{GT+3}], v{T+1}, s[4:5]
        s_lshl_b32 s36, s33, 19
        s_lshl_b32 s37, s34, 10
        s_add_u32 s36, s36, s37
        s_lshl_b32 s37, s44, 7
        s_add_u32 s36, s36, s37
        v_lshl_add_u32 v{T+1}, v2, 16, v3
        v_add_u32 v{T+1}, s36, v{T+1}''')
        for i in range(8):
            a(f'global_load_dwordx4 v[{A+4*i}:{A+4*i+3}], v{T+1}, s[10:11] {s.wnt}')
            if i<7: a(f'v_add_u32 v{T+1}, 8192, v{T+1}')
        s.masks(MK)
        a(f'''v_lshlrev_b32 v150, 3, v{T}
        v_add_u32 v150, {WS_H1}, v150
        v_add_u32 v151, 21504, v150
        v_add_u32 v152, 21504, v151
        v_add_u32 v153, 21504, v152
        s_lshl_b32 s36, s33, 8
        v_lshl_add_u32 v{TBW}, v1, 2, s36
        v_lshl_add_u32 v{TBR}, v2, 5, s36
        s_lshl_b32 s36, s33, 10
        v_lshl_add_u32 v{DDW}, v1, 4, s36
        v_lshlrev_b32 v149, 2, v{T}
        s_waitcnt vmcnt(8) lgkmcnt(0)
        s_add_u32 s32, s32, 0x9e3779b9
        v_lshlrev_b32 v{XC}, 16, v{XC}''')
        X=GT+4
        for r in range(4):
            a(f'v_lshlrev_b32 v{X+2*r}, 16, v{GT+r}\nv_and_b32 v{X+2*r+1}, 0xffff0000, v{GT+r}')
        a(f'v_cmp_gt_u32 s[48:49], 56, v1\nv_add_f32 v{T}, v{X}, v{X+1}')
        for r in range(2,8): a(f'v_add_f32 v{T}, v{T}, v{X+r}')
        a(f'v_cndmask_b32 v{T}, 0, v{T}, s[48:49]')
        s.wavesum(T,T+1)
        a(f'v_mul_f32 v{T}, {hex(f2u(1/448))}, v{T}')
        for r in range(8): a(f'v_sub_f32 v{X+r}, v{X+r}, v{T}')
        a(f'v_mul_f32 v{T+2}, v{X}, v{X}')
        for r in range(1,8): a(f'v_fmac_f32 v{T+2}, v{X+r}, v{X+r}')
        a(f'v_cndmask_b32 v{T+2}, 0, v{T+2}, s[48:49]')
        s.wavesum(T+2,T+1)
        a(f'v_mul_f32 v{T+2}, {hex(f2u(1/448))}, v{T+2}')
        s.lnfin(LN,XC,T,T+2,T+3)
        s.stamp(1)
        ld='\n'.join(f'global_load_dwordx2 v[{GT+4*q+2*sec}:{GT+4*q+2*sec+1}], v{150+q}, s[30:31] offset:{3584*sec} sc1' for q in range(4) for sec in range(2))
        s.poll(ld,[GT+2*i+1 for i in range(8)],T)
        s.stamp(2)
        if s.debug: a('s_mov_b32 s90, s42')
        a(f'''v_add_f32 v{T}, v{GT}, v{GT+4}
        v_add_f32 v{T+1}, v{GT+2}, v{GT+6}
        v_add_f32 v{T+2}, v{GT+8}, v{GT+12}
        v_add_f32 v{T+3}, v{GT+10}, v{GT+14}
        v_add_f32 v{T}, v{T}, v{T+2}
        v_add_f32 v{T+1}, v{T+1}, v{T+3}
        v_cvt_pk_bf16_f32 v{T}, v{T}, v{T+1}
        v_and_b32 v{T+1}, 0xffff0000, v{T}
        v_lshlrev_b32 v{T}, 16, v{T}
        v_add_f32 v{T+1}, 1.0, v{T+1}''')
        s.rnd(f'v{T+1}',f'v{T+1}')
        s.modulate_gemv(LN,T+1,T,T+2,TBW,TBR,DDW,DUP,A,MK,B,D)
        s.stamp(3)
        a(f'''s_cmp_eq_u32 s44, 7
        s_cbranch_scc1 L_aux_end''')
        for q in range(4): a(f'v_add_u32 v{150+q}, {3*3584}, v{150+q}\nv_add_u32 v{154+q}, {2*3584}, v{150+q}')
        ld='\n'.join(f'global_load_dwordx2 v[{GT+8*q+2*sec}:{GT+8*q+2*sec+1}], v{150+q}, s[30:31] offset:{3584*(sec-1)} sc1' for q in range(4) for sec in range(3))
        ld+='\n'+'\n'.join(f'global_load_dwordx2 v[{GT+8*q+6}:{GT+8*q+7}], v{154+q}, s[30:31] sc1' for q in range(4))
        s.poll(ld,[GT+2*i+1 for i in range(16)],T)
        s.stamp(4)
        a(f'''v_bfe_u32 v{T}, v1, 2, 1
        v_cmp_eq_u32 vcc, 1, v{T}
        v_mov_b32 v{T+2}, s16
        v_mov_b32 v{T+3}, s17
        v_mov_b32 v{T+4}, s18
        v_mov_b32 v{T+5}, s19
        v_cndmask_b32 v{T+2}, v{T+2}, v{T+4}, vcc
        v_cndmask_b32 v{T+3}, v{T+3}, v{T+5}, vcc
        s_mul_i32 s36, s33, {64*3584}
        s_lshl_b32 s37, s45, 6
        s_add_u32 s36, s36, s37
        s_add_u32 s36, s36, 3584
        v_mul_u32_u24 v{T+4}, {8*3584}, v2
        v_and_b32 v{T+5}, 3, v1
        v_lshlrev_b32 v{T+5}, 4, v{T+5}
        v_add3_u32 v{T+4}, v{T+4}, v{T+5}, s36
        v_mov_b32 v{T+5}, 0
        v_lshl_add_u64 v[{T+2}:{T+3}], v[{T+4}:{T+5}], 0, v[{T+2}:{T+3}]
        s_mov_b64 s[36:37], {3*3584}''')
        for i in range(8):
            a(f'global_load_dwordx4 v[{A+4*i}:{A+4*i+3}], v[{T+2}:{T+3}], off offset:{3584*(i%3-1)} {s.wnt}')
            if i%3==2: a(f'v_lshl_add_u64 v[{T+2}:{T+3}], v[{T+2}:{T+3}], 0, s[36:37]')
        for k,dst in enumerate((GA,SB,CB,T+6)):
            a(f'''v_add_f32 v{T}, v{GT+2*k}, v{GT+8+2*k}
            v_add_f32 v{T+1}, v{GT+16+2*k}, v{GT+24+2*k}
            v_add_f32 v{T}, v{T}, v{T+1}''')
            s.rnd(f'v{dst}',f'v{T}')
        a(f'v_add_f32 v{CB}, 1.0, v{CB}'); s.rnd(f'v{CB}',f'v{CB}')
        a(f'''ds_write_b32 v149, v{T+6} offset:{L_GB}
        s_cmp_lt_u32 s33, 4
        s_cbranch_scc1 L_aux_h4''')
        s.down_loads(A2,T)
        a(f'''L_aux_h4:
        s_lshl_b32 s36, s33, 9
        s_add_u32 s36, s36, {WS_H4+3584}
        v_lshrrev_b32 v{T}, 4, v1
        v_lshl_add_u32 v150, v{T}, 7, v3
        v_add_u32 v150, s36, v150
        v_add_u32 v151, {3*3584}, v150
        v_add_u32 v152, {3*3584}, v151
        v_lshrrev_b32 v{T}, 5, v1
        s_lshl_b32 s36, s33, 2
        v_lshl_add_u32 v153, v{T}, 5, s36
        v_mov_b32 v154, 0
        s_mov_b32 s46, 0xff00ff00
        s_mov_b32 s47, 0xff00ff00''')
        s.stamp(5)
        ld='\n'.join(f'global_load_dwordx4 v[{GT+4*i}:{GT+4*i+3}], v{150+i//3}, s[30:31] offset:{3584*(i%3-1)} sc1' for i in range(8))
        s.poll(ld,[GT+4*i+2 for i in range(8)],T,s.sleep4)
        s.stamp(6)
        if s.debug: a('s_mov_b32 s88, s42')
        P=lambda i:f'v[{GT+4*i}:{GT+4*i+1}]'
        for (x,y) in ((0,1),(2,3),(4,5),(6,7),(0,2),(4,6),(0,4)): a(f'v_pk_add_f32 {P(x)}, {P(x)}, {P(y)}')
        a(f'v_cndmask_b32 v{T}, v{GT}, v{GT+1}, s[46:47]')
        s.rnd(f'v{T}',f'v{T}')
        a(f'v_mul_f32 v{T}, v{GA}, v{T}'); s.rnd(f'v{T}',f'v{T}')
        a(f'v_add_f32 v{T}, v{XC}, v{T}'); s.rnd(f'v{XC}',f'v{T}')
        a(f'v_mul_f32 v{T+1}, v{XC}, v{XC}\nv_add_f32_dpp v{T}, v{XC}, v{XC} row_ror:1 {DPPF}\nv_add_f32_dpp v{T+1}, v{T+1}, v{T+1} row_ror:1 {DPPF}\nds_write_b32 v149, v{XC} offset:{L_X1}')
        for k in (2,4,8): a(f'v_add_f32_dpp v{T}, v{T}, v{T} row_ror:{k} {DPPF}\nv_add_f32_dpp v{T+1}, v{T+1}, v{T+1} row_ror:{k} {DPPF}')
        a(f'v_permlane32_swap_b32 v{T}, v{T+1}\nv_add_f32 v{T}, v{T}, v{T+1}')
        s.bfly('v_add_f32',T,T+1,16)
        a(f'''ds_write_b32 v153, v{T} offset:{L_ST}
        s_waitcnt lgkmcnt(0)
        s_barrier
        ds_read_b128 v[{GT}:{GT+3}], v154 offset:{L_ST}
        ds_read_b128 v[{GT+8}:{GT+11}], v154 offset:{L_ST+32}
        ds_read_b128 v[{GT+4}:{GT+7}], v154 offset:{L_ST+16}
        ds_read_b128 v[{GT+12}:{GT+15}], v154 offset:{L_ST+48}
        s_waitcnt lgkmcnt(0)
        v_pk_add_f32 v[{GT}:{GT+1}], v[{GT}:{GT+1}], v[{GT+2}:{GT+3}]
        v_pk_add_f32 v[{GT+8}:{GT+9}], v[{GT+8}:{GT+9}], v[{GT+10}:{GT+11}]
        v_pk_add_f32 v[{GT}:{GT+1}], v[{GT}:{GT+1}], v[{GT+4}:{GT+5}]
        v_pk_add_f32 v[{GT+8}:{GT+9}], v[{GT+8}:{GT+9}], v[{GT+12}:{GT+13}]
        v_add_f32 v{GT}, v{GT}, v{GT+1}
        v_add_f32 v{GT+8}, v{GT+8}, v{GT+9}
        v_add_f32 v{T}, v{GT}, v{GT+6}
        v_add_f32 v{T+2}, v{GT+8}, v{GT+14}
        v_mul_f32 v{T}, {hex(f2u(1/448))}, v{T}
        v_mul_f32 v{T+2}, {hex(f2u(1/448))}, v{T+2}
        v_fma_f32 v{T+2}, -v{T}, v{T}, v{T+2}
        v_max_f32 v{T+2}, 0, v{T+2}''')
        s.lnfin(LN,XC,T,T+2,T+3)
        s.stamp(7)
        s.modulate_gemv(LN,CB,SB,T+2,TBW,TBR,DDW,DUP,A,MK,B,D)
        s.stamp(8)
        a(f'''s_cmp_ge_u32 s33, 4
        s_cbranch_scc1 L_aux_down
        s_cmp_lg_u32 s33, 0
        s_cbranch_scc1 L_aux_end
        s_bitcmp1_b32 s45, 0
        s_cbranch_scc1 L_aux_end
        s_lshr_b32 s46, s45, 1
        s_lshl_b32 s36, s46, 6
        v_lshrrev_b32 v{T}, 2, v3
        v_add_u32 v{T}, s36, v{T}
        v_add_u32 v{T+1}, {L_GB}, v{T}
        v_add_u32 v{T}, {L_X1}, v{T}
        ds_read2_b32 v[{T+2}:{T+3}], v{T} offset0:0 offset1:8
        ds_read2_b32 v[{T+4}:{T+5}], v{T+1} offset0:0 offset1:8
        s_mul_i32 s36, s46, 7168
        s_add_u32 s36, s36, {WS_H5+3072}
        v_lshl_add_u32 v150, v1, 4, s36
        s_lshl_b32 s36, s46, 5
        v_lshrrev_b32 v151, 3, v3
        v_add_u32 v151, s36, v151
        s_waitcnt lgkmcnt(0)''')
        ld='\n'.join(f'global_load_dwordx4 v[{GT+4*i}:{GT+4*i+3}], v150, s[30:31] offset:{1024*(i-3)} sc1' for i in range(7))
        s.poll(ld,[GT+4*i+2 for i in range(7)],T+6,s.sleep5)
        s.stamp(9)
        if s.debug: a('s_mov_b32 s86, s42')
        for (x,y) in ((0,1),(2,3),(4,5),(0,2),(4,6),(0,4)): a(f'v_pk_add_f32 {P(x)}, {P(x)}, {P(y)}')
        a(f'''v_add_f32_dpp v{GT}, v{GT}, v{GT} row_ror:8 {DPPF}
        v_add_f32_dpp v{GT+1}, v{GT+1}, v{GT+1} row_ror:8 {DPPF}
        v_mov_b32 v{GT+2}, v{GT}
        v_mov_b32 v{GT+3}, v{GT+1}
        v_permlane16_swap_b32 v{GT+2}, v{GT}
        v_permlane16_swap_b32 v{GT+3}, v{GT+1}
        v_pk_add_f32 v[{GT}:{GT+1}], v[{GT}:{GT+1}], v[{GT+2}:{GT+3}]
        v_mov_b32 v{GT+2}, v{GT}
        v_mov_b32 v{GT+3}, v{GT+1}
        v_permlane32_swap_b32 v{GT+2}, v{GT}
        v_permlane32_swap_b32 v{GT+3}, v{GT+1}
        v_pk_add_f32 v[{GT}:{GT+1}], v[{GT}:{GT+1}], v[{GT+2}:{GT+3}]
        v_cvt_pk_bf16_f32 v{GT}, v{GT}, v{GT+1}
        v_and_b32 v{GT+1}, 0xffff0000, v{GT}
        v_lshlrev_b32 v{GT}, 16, v{GT}
        v_pk_mul_f32 v[{GT}:{GT+1}], v[{GT}:{GT+1}], v[{T+4}:{T+5}]
        v_cvt_pk_bf16_f32 v{GT}, v{GT}, v{GT+1}
        v_and_b32 v{GT+1}, 0xffff0000, v{GT}
        v_lshlrev_b32 v{GT}, 16, v{GT}
        v_pk_add_f32 v[{GT}:{GT+1}], v[{GT}:{GT+1}], v[{T+2}:{T+3}]
        v_cvt_pk_bf16_f32 v{GT}, v{GT}, v{GT+1}
        s_mov_b64 exec, 0xff
        global_store_short v151, v{GT}, s[26:27]
        global_store_short_d16_hi v151, v{GT}, s[26:27] offset:16
        s_cmp_lg_u32 s46, 0
        s_cbranch_scc1 L_aux_end
        s_mov_b64 exec, 1
        v_mov_b32 v{T}, 0
        v_mov_b32 v{T+1}, s32
        global_store_dword v{T}, v{T+1}, s[30:31] sc1
        s_branch L_aux_end''')
        a(f'''L_aux7:''')
        s.masks(MK)
        s.ddr_addr(DDR,T)
        a(f'''s_lshl_b32 s36, s34, 11
        s_lshl_b32 s37, s44, 8
        s_add_u32 s36, s36, s37
        s_add_u32 s36, s36, {WS_H2}
        v_lshl_add_u32 v150, v1, 2, s36
        s_waitcnt lgkmcnt(0)
        s_add_u32 s32, s32, 0x9e3779b9
        s_barrier''')
        s.dd_sum(GT,DDR)
        a(f'''v_mov_b32_dpp v{GT+1}, v{GT} quad_perm:[1,1,3,3] {DPPF}
        v_cvt_pk_bf16_f32 v{GT}, v{GT}, v{GT+1}
        v_mov_b32 v{GT+1}, s32
        s_mov_b32 exec_lo, 0x55555555
        s_mov_b32 exec_hi, 0x55555555
        global_store_dwordx2 v150, v[{GT}:{GT+1}], s[30:31] sc1
        s_mov_b64 exec, -1''')
        s.stamp(3)
        a('''s_cmp_eq_u32 s44, 7
        s_cbranch_scc1 L_aux_end''')
        s.down_loads(A2,T)
        a('''s_mov_b32 s46, 0xff00ff00
        s_mov_b32 s47, 0xff00ff00
        s_barrier
        s_barrier
        L_aux_down:''')
        s.dd_sum(GT,DDR)
        s.rnd(f'v{GT}',f'v{GT}')
        a(f'v_mov_b32 v{GT+1}, v{GT}\nv_permlane32_swap_b32 v{GT}, v{GT+1}')
        s.silu(GT,GT,GT+2); s.rnd(f'v{GT}',f'v{GT}')
        a(f'''v_mul_f32 v{GT}, v{GT}, v{GT+1}
        v_cvt_pk_bf16_f32 v{GT}, v{GT}, v{GT}
        ds_write_b32 v160, v{GT}
        ds_read_b128 v[{DUP}:{DUP+3}], v161
        ds_read_b128 v[{DUP+4}:{DUP+7}], v161 offset:16
        s_waitcnt vmcnt(0) lgkmcnt(0)''')
        s.stamp(10)
        s.gemv_steps(D,A2,DUP,8,MK,B)
        a(f'''v_mov_b32 v{T+6}, s32
        v_mov_b32 v{T+7}, s32
        v_cndmask_b32 v{T+4}, v{D}, v{D+2}, s[46:47]
        v_cndmask_b32 v{T+5}, v{D+1}, v{D+3}, s[46:47]
        s_mov_b32 exec_hi, 0x00ffffff
        global_store_dwordx4 v162, v[{T+4}:{T+7}], s[30:31] sc1''')
        s.stamp(11)
        a('L_aux_end:')
        s.end()
    def ddr_addr(s,DDR,T):
        s.a(f'''v_lshrrev_b32 v{DDR}, 5, v1
        v_lshl_add_u32 v{DDR}, v{DDR}, 8, v3
        v_bfe_u32 v{T}, v1, 3, 2
        v_lshl_add_u32 v{DDR}, v{T}, 2, v{DDR}
        v_add_u32 v{DDR}, {L_DD}, v{DDR}''')
        for w in range(1,7): s.a(f'v_add_u32 v{164+w}, {1024*w}, v{DDR}')
    def dd_sum(s,GT,DDR):
        a=s.a
        for w in range(7): a(f'ds_read2_b32 v[{GT+2*w}:{GT+2*w+1}], v{DDR if w==0 else 164+w} offset0:0 offset1:160')
        a('s_waitcnt lgkmcnt(0)')
        P=lambda i:f'v[{GT+2*i}:{GT+2*i+1}]'
        for (x,y) in ((0,1),(2,3),(4,5),(0,2),(4,6),(0,4)): a(f'v_pk_add_f32 {P(x)}, {P(x)}, {P(y)}')
        a(f'v_add_f32 v{GT}, v{GT}, v{GT+1}')
    def down_loads(s,A2,T):
        a=s.a
        a(f'''s_sub_u32 s38, s33, 4
        s_mul_i32 s36, s45, {32*896}
        s_mul_i32 s37, s38, 224
        s_add_u32 s36, s36, s37
        s_add_u32 s36, s36, {3*896}
        v_lshrrev_b32 v{T}, 4, v1
        v_mul_u32_u24 v{T+1}, {8*896}, v{T}
        v_and_b32 v{T+2}, 15, v1
        v_min_u32 v{T+2}, 13, v{T+2}
        v_lshlrev_b32 v{T+2}, 4, v{T+2}
        v_add3_u32 v{T+1}, v{T+1}, v{T+2}, s36''')
        for t in range(8): a(f'global_load_dwordx4 v[{A2+4*t}:{A2+4*t+3}], v{T+1}, s[20:21] offset:{896*(t-3)} {s.wnt}')
        a(f'''s_lshl_b32 s36, s38, 7
        s_add_u32 s36, s36, {L_ACT}
        v_and_b32 v{T+2}, 31, v1
        v_lshl_add_u32 v160, v{T+2}, 2, s36
        v_lshl_add_u32 v161, v{T}, 5, s36
        s_mul_i32 s36, s38, {7*7168}
        s_lshl_b32 s37, s45, 7
        s_add_u32 s36, s36, s37
        s_add_u32 s36, s36, {WS_H5}
        v_mul_u32_u24 v162, 7168, v2
        v_add3_u32 v162, v162, v3, s36''')
        s.ddr_addr(148,T)
    def lnfin(s,LN,X,MU,VAR,t):
        a=s.a
        a(f'''v_cvt_pk_bf16_f32 v{MU}, v{MU}, v{VAR}
        v_and_b32 v{VAR}, 0xffff0000, v{MU}
        v_lshlrev_b32 v{MU}, 16, v{MU}
        v_add_f32 v{VAR}, {hex(f2u(1e-5))}, v{VAR}
        v_sub_f32 v{MU}, v{X}, v{MU}
        v_cvt_pk_bf16_f32 v{MU}, v{MU}, v{VAR}
        v_and_b32 v{VAR}, 0xffff0000, v{MU}
        v_sqrt_f32 v{VAR}, v{VAR}
        v_lshlrev_b32 v{MU}, 16, v{MU}''')
        s.rnd(f'v{VAR}',f'v{VAR}')
        a(f'v_rcp_f32 v{VAR}, v{VAR}\nv_mul_f32 v{LN}, v{MU}, v{VAR}')
        s.rnd(f'v{LN}',f'v{LN}')
    def modulate_gemv(s,LN,SC,SH,t,TBW,TBR,DDW,DUP,A,MK,B,D):
        a=s.a
        a(f'v_mul_f32 v{t}, v{LN}, v{SC}'); s.rnd(f'v{t}',f'v{t}')
        a(f'''v_add_f32 v{t}, v{t}, v{SH}
        v_cvt_pk_bf16_f32 v{t}, v{t}, v{t}
        ds_write_b32 v{TBW}, v{t} offset:{L_TB}
        ds_read_b128 v[{DUP}:{DUP+3}], v{TBR} offset:{L_TB}
        ds_read_b128 v[{DUP+4}:{DUP+7}], v{TBR} offset:{L_TB+16}
        s_waitcnt lgkmcnt(0)''')
        s.gemv_steps(D,A,DUP,8,MK,B)
        a(f'''ds_write_b128 v{DDW}, v[{D}:{D+3}] offset:{L_DD}
        s_waitcnt lgkmcnt(0)
        s_barrier''')
    def build(s):
        s.prologue(); s.awave(); s.rwave(); s.aux()
        s.a('L_exit:\ns_endpgm')
        body=pad(s.a.text())
        hdr=open('cdna_kernels/'+NAME+'.s.ref').read().split('; Override launch')[0]
        return f'''{hdr}; One persistent launch, one 8-wave workgroup per CU. Generated by my own script (work/gen.py).
; @launch grid=(256,1,1) block=(512,1,1) lds=16384
.amdgcn_target "amdgcn-amd-amdhsa--gfx950"
.text
.globl {NAME}_kernel
.p2align 8
.type {NAME}_kernel,@function
{NAME}_kernel:
{body}
.section .rodata,"a"
.p2align 6
.amdhsa_kernel {NAME}_kernel
  .amdhsa_next_free_vgpr 256
  .amdhsa_next_free_sgpr 102
  .amdhsa_accum_offset 256
  .amdhsa_group_segment_fixed_size 0
  .amdhsa_kernarg_size 112
  .amdhsa_user_sgpr_count 2
  .amdhsa_user_sgpr_kernarg_segment_ptr 1
  .amdhsa_system_sgpr_workgroup_id_x 1
  .amdhsa_float_denorm_mode_32 3
.end_amdhsa_kernel
'''
if __name__=='__main__':
    out=sys.argv[1]
    kw={}
    for x in sys.argv[2:]:
        k,v=x.split('=')
        kw[k]=int(v) if v.lstrip('-').isdigit() else v
    open(out,'w').write(G(**kw).build())
```

```python
import sys
from asmgen import Asm, NAME
from hazard import pad

STAMP_OFF=200*1024*1024
WS_XT =0x400
WS_H2 =0x1000
WS_H4 =0x8000
WS_H1 =0x10000
WS_H5 =0x28000
WS_H35=0x60000
WS_H3 =0xD0000
L_Q=0; L_MX=1024; L_LS=1056; L_FLAG=1088; L_P=2048; L_MT=10240; L_MD=11264
L_TB=0; L_DD=2048; L_ST=9216; L_X1=9344; L_GB=11136; L_ACT=12928
LOG2E=1.4426950408889634
import struct
def f2u(x): return struct.unpack('<I',struct.pack('<f',x))[0]
DPPF='row_mask:0xf bank_mask:0xf'

class G:
    DBG=[(0*8+4,0,[0,1,2,3,6]),(0*8+1,5,[1,2]),(0*8+0,7,[4,6,7,9]),(192*8+0,11,[0,1,2,3,4,5,6,7,8,9,15]),(192*8+7,22,[3,10,11]),(7*8+4,25,[0,2,6]),(199*8+0,28,[0,6]),(241*8+0,30,[0,15])]
    def __init__(s, debug=False, win=3, nt='nt', local=True, limit=200000, prefetch=True, prewarm=True, wnt='nt', sleep4=0, sleep5=0, sleep3=0, sleepq=0, dbgout=0, probe=0):
        s.a=Asm(); s.debug=debug; s.win=win; s.nt=nt; s.local=local; s.limit=limit; s.prefetch=prefetch; s.prewarm=prewarm
        s.dbgout=dbgout; s.probe=probe; s.wnt=wnt; s.sleep4=sleep4; s.sleep5=sleep5; s.sleep3=sleep3; s.sleepq=sleepq
    def stamp(s,i):
        if s.debug: s.a(f's_memrealtime s[{64+2*i}:{65+2*i}]')
    def end(s):
        a=s.a
        if s.debug:
            a('s_memrealtime s[94:95]\ns_waitcnt lgkmcnt(0)\ns_mov_b64 exec, -1\nv_mov_b32 v2, 0')
            for i in range(16): a(f'v_writelane_b32 v2, s{64+2*i}, {i}')
            a(f'''s_lshl_b32 s36, s2, 3
            s_add_u32 s36, s36, s33
            s_lshl_b32 s36, s36, 6
            s_add_u32 s36, s36, {STAMP_OFF}
            v_lshl_add_u32 v3, v1, 2, s36
            s_mov_b64 exec, 0xffff
            global_store_dword v3, v2, s[30:31]''')
            if s.dbgout:
                for key,first,idx in s.DBG:
                    l=a.label('dbg')
                    a(f's_lshl_b32 s36, s2, 3\ns_add_u32 s36, s36, s33\ns_cmp_lg_u32 s36, {key}\ns_cbranch_scc1 {l}\ns_mov_b64 exec, -1\nv_mov_b32 v3, 0\ns_mov_b64 exec, 1')
                    for n,i in enumerate(idx):
                        a(f'v_mov_b32 v2, s{64+2*i}\nv_mov_b32 v3, {2*(first+n)}\nglobal_store_short v3, v2, s[28:29]')
                    a(f'{l}:')
        a('s_endpgm')
    def rnd(s,dst,src,tmp=None):
        t=tmp or dst
        s.a(f'v_cvt_pk_bf16_f32 {t}, {src}, {src}\nv_and_b32 {dst}, 0xffff0000, {t}')
    def masks(s,r):
        a=s.a
        a(f'''v_and_b32 v{r}, 1, v1
        v_lshlrev_b32 v{r}, 4, v{r}
        v_mov_b32 v{r+1}, 0xffff
        v_lshlrev_b32 v{r+3}, v{r}, v{r+1}
        v_bfe_u32 v{r}, v1, 1, 2
        v_cmp_eq_u32 vcc, 1, v{r}
        v_cmp_eq_u32 s[36:37], 2, v{r}
        v_cmp_eq_u32 s[38:39], 3, v{r}
        v_cmp_eq_u32 s[40:41], 0, v{r}
        v_cndmask_b32 v{r+1}, 0, v{r+3}, vcc
        v_cndmask_b32 v{r+2}, 0, v{r+3}, s[36:37]
        v_cndmask_b32 v{r}, 0, v{r+3}, s[40:41]
        v_cndmask_b32 v{r+3}, 0, v{r+3}, s[38:39]''')
    def tagcheck(s,tags,t,pre=None):
        a=s.a; outs=[]; i=0; k=t
        while i<len(tags):
            if i+1<len(tags): a(f'v_bitop3_b32 v{k}, v{tags[i]}, v{tags[i+1]}, s32 bitop3:0x7e'); i+=2
            else: a(f'v_xor_b32 v{k}, s32, v{tags[i]}'); i+=1
            outs.append(k); k+=1
        while len(outs)>1:
            if len(outs)>=3: a(f'v_or3_b32 v{outs[0]}, v{outs[0]}, v{outs[1]}, v{outs[2]}'); outs=[outs[0]]+outs[3:]
            else: a(f'v_or_b32 v{outs[0]}, v{outs[0]}, v{outs[1]}'); outs=[outs[0]]
        a(f'v_cmp_ne_u32 vcc, 0, v{outs[0]}')
    def poll(s,loads,tags,t,sleep=0):
        a=s.a; lp=a.label('poll'); dn=a.label('pdone')
        a(f's_mov_b32 s42, 0\n{lp}:')
        a(loads); a('s_waitcnt vmcnt(0)')
        s.tagcheck(tags,t)
        a(f's_cbranch_vccz {dn}')
        if sleep: a(f's_sleep {sleep}')
        a(f's_add_u32 s42, s42, 1\ns_cmp_lt_u32 s42, {s.limit}\ns_cbranch_scc1 {lp}\n{dn}:')
    def gemv_steps(s,D,A,dup,n,mk,B,dpp=None):
        a=s.a
        for i in range(n):
            b=B+4*(i&1)
            for r in range(4):
                if dpp: a(f'v_and_b32_dpp v{b+r}, v{dpp(i)[0]}, v{mk+r} quad_perm:[{dpp(i)[1]},{dpp(i)[1]},{dpp(i)[1]},{dpp(i)[1]}] {DPPF}')
                else: a(f'v_and_b32 v{b+r}, v{dup+i}, v{mk+r}')
            if i>0:
                j=i-1; bj=B+4*(j&1)
                a(f'v_mfma_f32_16x16x32_bf16 v[{D}:{D+3}], v[{A+4*j}:{A+4*j+3}], v[{bj}:{bj+3}], {"0" if j==0 else f"v[{D}:{D+3}]"}')
        j=n-1; bj=B+4*(j&1)
        a(f'v_mfma_f32_16x16x32_bf16 v[{D}:{D+3}], v[{A+4*j}:{A+4*j+3}], v[{bj}:{bj+3}], v[{D}:{D+3}]')
    def bfly(s,op,v,t,which):
        s.a(f'v_mov_b32 v{t}, v{v}\nv_permlane{which}_swap_b32 v{t}, v{v}\n{op} v{v}, v{v}, v{t}')
    def wavesum(s,v,t):
        for k in (1,2,4,8): s.a(f'v_add_f32_dpp v{v}, v{v}, v{v} row_ror:{k} {DPPF}')
        s.bfly('v_add_f32',v,t,16); s.bfly('v_add_f32',v,t,32)
    def silu(s,dst,x,t):
        s.a(f'''v_mul_f32 v{t}, {hex(f2u(-LOG2E))}, v{x}
        v_exp_f32 v{t}, v{t}
        v_add_f32 v{t}, 1.0, v{t}
        v_rcp_f32 v{t}, v{t}
        v_mul_f32 v{dst}, v{x}, v{t}''')
    def store2(s,ins):
        a=s.a
        if not s.local: a(ins+' sc1'); return
        l1=a.label('st'); l2=a.label('st')
        a(f's_cmp_eq_u32 s43, 0\ns_cbranch_scc1 {l1}\n{ins}\ns_branch {l2}\n{l1}:\n{ins} sc1\n{l2}:')

    def prologue(s):
        a=s.a
        if s.debug:
            for i in range(64,96,2): a(f's_mov_b64 s[{i}:{i+1}], 0')
        s.stamp(0)
        if s.probe: a('s_memrealtime s[62:63]')
        a('''s_cmp_ge_u32 s2, 256
        s_cbranch_scc1 L_exit
        s_load_dwordx4 s[28:31], s[0:1], 96
        s_load_dwordx16 s[4:19], s[0:1], 0
        s_load_dwordx8 s[20:27], s[0:1], 64
        v_lshrrev_b32 v2, 6, v0
        v_and_b32 v1, 63, v0
        s_and_b32 s34, s2, 7
        s_lshr_b32 s35, s2, 3
        v_readfirstlane_b32 s33, v2
        s_cmp_ge_u32 s35, 24
        s_cbranch_scc1 L_aux
        s_cmp_ge_u32 s33, 4
        s_cbranch_scc0 L_R''')
    def awave(s):
        a=s.a; NG=11
        K=8; V=K+8*NG; D=V+8*NG
        S=200; Q=212; MK=220; O=224; T=232
        vK=2; vV=3
        a(f'''; ---------------- attention wave ----------------
        s_sub_u32 s44, s33, 4
        s_mul_i32 s36, s44, 24
        s_add_u32 s45, s36, s35
        s_lshl_b32 s37, s34, 23
        s_lshl_b32 s38, s45, 11
        s_add_u32 s37, s37, s38
        s_add_u32 s37, s37, {12288*512}
        v_lshrrev_b32 v4, 4, v1
        v_and_b32 v5, 15, v1
        v_lshlrev_b32 v{vV}, 9, v4
        v_lshl_add_u32 v{vV}, v5, 4, v{vV}
        v_and_b32 v6, 3, v1
        v_lshlrev_b32 v6, 4, v6
        v_lshl_add_u32 v6, v4, 6, v6
        v_lshrrev_b32 v5, 2, v5
        v_lshl_add_u32 v{vK}, v5, 9, v6
        s_waitcnt lgkmcnt(0)
        s_add_u32 s6, s6, s37
        s_addc_u32 s7, s7, 0
        s_add_u32 s8, s8, s37
        s_addc_u32 s9, s9, 0
        s_load_dword s32, s[30:31], 0''')
        n=[0]
        def pair(reg,voff,base):
            if n[0]>=s.win: a(f's_waitcnt vmcnt({2*(s.win-1)})')
            a(f'global_load_dwordx4 v[{reg}:{reg+3}], v{voff}, {base} {s.nt}')
            a(f'global_load_dwordx4 v[{reg+4}:{reg+7}], v{voff}, {base} offset:256 {s.nt}')
            n[0]+=1
        for (R,vo,base,nm) in ((K,vK,'s[6:7]','K'),(V,vV,'s[8:9]','V')):
            sk=a.label('skip')
            a(f's_cmp_ge_u32 s45, 64\ns_cbranch_scc1 {sk}\nv_add_u32 v7, {10*196608}, v{vo}')
            pair(R+80,7,base)
            a(f'{sk}:')
            for i in range(10):
                pair(R+8*i,vo,base)
                if i<9: a(f'v_add_u32 v{vo}, {196608}, v{vo}')
                if nm=='K' and i==2:
                    s.masks(MK)
                    sk2=a.label('z')
                    a(f's_cmp_lt_u32 s45, 64\ns_cbranch_scc1 {sk2}')
                    for r in range(8): a(f'v_mov_b32 v{V+80+r}, 0')
                    a(f'{sk2}:')
                    a(f'''v_bfe_u32 v5, v1, 3, 1
                    v_lshl_add_u32 v{T+8}, v5, 9, v6
                    s_lshl_b32 s36, s44, 2
                    v_lshl_add_u32 v{T+9}, v5, 4, s36
                    v_lshlrev_b32 v{T+10}, 4, v5
                    s_lshl_b32 s36, s44, 11
                    s_add_u32 s36, s36, {L_P}
                    v_lshl_add_u32 v{T+11}, v1, 4, s36
                    s_and_b32 s36, s44, 1
                    s_lshl_b32 s36, s36, 10
                    s_lshr_b32 s46, s44, 1
                    s_lshl_b32 s37, s46, 7
                    s_add_u32 s36, s36, s37
                    s_add_u32 s36, s36, {L_P}
                    v_and_b32 v5, 15, v1
                    v_lshl_add_u32 v{T+12}, v5, 3, s36
                    v_lshl_add_u32 v{T+12}, v4, 8, v{T+12}
                    s_lshl_b32 s36, s34, 4
                    s_lshl_b32 s37, s44, 2
                    s_add_u32 s36, s36, s37
                    s_mul_i32 s36, s36, 6144
                    s_lshl_b32 s37, s35, 8
                    s_add_u32 s36, s36, s37
                    s_add_u32 s36, s36, {WS_H3}
                    v_mul_u32_u24 v{T+13}, 6144, v4
                    v_lshl_add_u32 v{T+13}, v5, 4, v{T+13}
                    v_add_u32 v{T+13}, s36, v{T+13}
                    s_lshl_b32 s36, s46, 4
                    v_mov_b32 v{T+14}, s36
                    s_waitcnt lgkmcnt(0)
                    s_add_u32 s32, s32, 0x9e3779b9''')
            if nm=='K':
                s.stamp(1); a('s_barrier')
        s.stamp(2)
        a('s_barrier')
        s.stamp(3)
        a(f'''ds_read_b128 v[{Q}:{Q+3}], v{T+8} offset:{L_Q}
        ds_read_b128 v[{Q+4}:{Q+7}], v{T+8} offset:{L_Q+256}
        v_mov_b32 v{T}, 0
        ds_read_b32 v{T+1}, v{T} offset:{L_FLAG}
        s_waitcnt lgkmcnt(0)
        v_readfirstlane_b32 s43, v{T+1}''')
        def diag(i):
            d=D+4*(i%4)
            a(f'''v_mov_b32_dpp v{S+i}, v{d} quad_perm:[0,0,0,0] {DPPF}
            v_add_f32_dpp v{S+i}, v{d+1}, v{S+i} quad_perm:[1,1,1,1] {DPPF}
            v_add_f32_dpp v{S+i}, v{d+2}, v{S+i} quad_perm:[2,2,2,2] {DPPF}
            v_add_f32_dpp v{S+i}, v{d+3}, v{S+i} quad_perm:[3,3,3,3] {DPPF}''')
        for i in range(NG):
            d=D+4*(i%4)
            a(f'v_mfma_f32_16x16x32_bf16 v[{d}:{d+3}], v[{K+8*i}:{K+8*i+3}], v[{Q}:{Q+3}], 0')
            a(f'v_mfma_f32_16x16x32_bf16 v[{d}:{d+3}], v[{K+8*i+4}:{K+8*i+7}], v[{Q+4}:{Q+7}], v[{d}:{d+3}]')
            if i>=2: diag(i-2)
        diag(NG-2); diag(NG-1)
        sk=a.label('inf')
        a(f's_cmp_lt_u32 s45, 64\ns_cbranch_scc1 {sk}\nv_mov_b32 v{S+10}, 0xff800000\n{sk}:')
        for i in range(0,NG,2):
            j=min(i+1,NG-1)
            a(f'v_cvt_pk_bf16_f32 v{T}, v{S+i}, v{S+j}\nv_lshlrev_b32 v{S+i}, 16, v{T}')
            if j!=i: a(f'v_and_b32 v{S+j}, 0xffff0000, v{T}')
        a(f'''v_max3_f32 v{T}, v{S}, v{S+1}, v{S+2}
        v_max3_f32 v{T+1}, v{S+3}, v{S+4}, v{S+5}
        v_max3_f32 v{T+2}, v{S+6}, v{S+7}, v{S+8}
        v_max3_f32 v{T}, v{T}, v{S+9}, v{S+10}
        v_max3_f32 v{T}, v{T}, v{T+1}, v{T+2}''')
        s.bfly('v_max_f32',T,T+1,16); s.bfly('v_max_f32',T,T+1,32)
        a(f'''ds_write_b32 v{T+9}, v{T} offset:{L_MX}
        s_waitcnt lgkmcnt(0)
        s_barrier
        ds_read_b128 v[{T}:{T+3}], v{T+10} offset:{L_MX}
        s_mov_b32 s47, {hex(f2u(LOG2E/16))}
        s_waitcnt lgkmcnt(0)
        v_max3_f32 v{T}, v{T}, v{T+1}, v{T+2}
        v_max_f32 v{T}, v{T}, v{T+3}
        v_mul_f32 v{T}, s47, v{T}''')
        for i in range(NG): a(f'v_fma_f32 v{S+i}, v{S+i}, s47, -v{T}')
        for i in range(NG): a(f'v_exp_f32 v{S+i}, v{S+i}')
        a(f'v_readlane_b32 s48, v{T}, 0\nv_readlane_b32 s49, v{T}, 8')
        B=K
        order=[10]+list(range(10))
        for i in order:
            a(f'v_cvt_pk_bf16_f32 v{T+1}, v{S+i}, v{S+i}')
            for r in range(4): a(f'v_and_b32 v{B+4*i+r}, v{T+1}, v{MK+r}')
        a(f'''v_add_f32 v{T+2}, v{S}, v{S+1}''')
        for i in range(2,NG): a(f'v_add_f32 v{T+2}, v{T+2}, v{S+i}')
        s.bfly('v_add_f32',T+2,T+3,16); s.bfly('v_add_f32',T+2,T+3,32)
        a(f'''ds_write_b32 v{T+9}, v{T+2} offset:{L_LS}
        s_cmp_eq_u32 s46, 0
        s_cselect_b32 s48, s48, s49''')
        s.stamp(4)
        for n_,i in enumerate(order):
            left=NG-1-n_
            if left==s.win-1 or left<s.win-1: a(f's_waitcnt vmcnt({2*left})')
            c0='0' if n_==0 else f'v[{O}:{O+3}]'; c1='0' if n_==0 else f'v[{O+4}:{O+7}]'
            a(f'v_mfma_f32_16x16x32_bf16 v[{O}:{O+3}], v[{V+8*i}:{V+8*i+3}], v[{B+4*i}:{B+4*i+3}], {c0}')
            a(f'v_mfma_f32_16x16x32_bf16 v[{O+4}:{O+7}], v[{V+8*i+4}:{V+8*i+7}], v[{B+4*i}:{B+4*i+3}], {c1}')
        s.stamp(5)
        a(f'''ds_write_b128 v{T+11}, v[{O}:{O+3}]
        ds_write_b128 v{T+11}, v[{O+4}:{O+7}] offset:1024
        s_waitcnt lgkmcnt(0)
        s_barrier
        ds_read_b128 v[8:11], v{T+14} offset:{L_LS}
        ds_read_b64 v[12:13], v{T+12}
        ds_read_b64 v[14:15], v{T+12} offset:2048
        ds_read_b64 v[16:17], v{T+12} offset:4096
        ds_read_b64 v[18:19], v{T+12} offset:6144
        v_mov_b32 v23, s32''')
        a('s_waitcnt lgkmcnt(0)' if s.debug else 's_waitcnt lgkmcnt(4)')
        a(f'''v_add_f32 v8, v8, v9
        v_add_f32 v10, v10, v11
        v_add_f32 v8, v8, v10
        v_rcp_f32 v9, v8
        v_log_f32 v10, v8
        s_waitcnt lgkmcnt(0)
        v_pk_add_f32 v[12:13], v[12:13], v[14:15]
        v_pk_add_f32 v[16:17], v[16:17], v[18:19]
        v_add_f32 v22, s48, v10
        v_pk_add_f32 v[12:13], v[12:13], v[16:17]
        v_mul_f32 v20, v12, v9
        v_mul_f32 v21, v13, v9''')
        s.store2(f'global_store_dwordx4 v{T+13}, v[20:23], s[30:31]')
        s.stamp(6)
        s.end()
    def rwave(s):
        a=s.a
        MK=4; A=8; DUP=64; B=80; D=88; T=92
        a(f'''L_R:
        s_waitcnt lgkmcnt(0)
        s_load_dword s32, s[30:31], 0
        s_cmp_eq_u32 s33, 1
        s_cbranch_scc0 L_R_notm
        s_cmp_lt_u32 s35, 21
        s_cbranch_scc0 L_R_notm
        s_mul_i32 s36, s34, 21
        s_add_u32 s36, s36, s35
        s_lshr_b32 s44, s36, 2
        s_and_b32 s45, s36, 3
        v_min_u32 v2, 55, v1
        s_mul_i32 s37, s45, 224
        v_lshl_add_u32 v3, v2, 2, s37
        global_load_dword v{T}, v3, s[22:23]
        s_mul_i32 s37, s45, {112*5376}
        s_lshl_b32 s38, s44, 7
        s_add_u32 s37, s37, s38
        v_lshrrev_b32 v{T+1}, 3, v1
        v_mul_u32_u24 v3, {14*5376}, v{T+1}
        v_and_b32 v{T+2}, 7, v1
        v_lshlrev_b32 v{T+2}, 4, v{T+2}
        v_add3_u32 v3, v3, v{T+2}, s37''')
        for i in range(14):
            a(f'global_load_dwordx4 v[{A+4*i}:{A+4*i+3}], v3, s[24:25] {s.wnt}')
            if i<13: a('v_add_u32 v3, 5376, v3')
        s.masks(MK)
        a(f'''v_mul_u32_u24 v3, 37, v2
        v_lshrrev_b32 v3, 8, v3
        v_mul_u32_u24 v{T+3}, 7, v3
        v_sub_u32 v{T+3}, v2, v{T+3}
        v_lshlrev_b32 v{T+3}, 3, v{T+3}
        v_lshl_add_u32 v3, v3, 6, v{T+3}
        v_lshlrev_b32 v{T+1}, 6, v{T+1}
        v_lshlrev_b32 v{T+8}, 4, v1
        v_lshrrev_b32 v{T+9}, 5, v1
        v_lshl_add_u32 v{T+9}, v{T+9}, 8, v{T+2}
        v_bfe_u32 v{T+10}, v1, 3, 2
        v_lshl_add_u32 v{T+9}, v{T+10}, 2, v{T+9}
        v_add_u32 v{T+9}, {L_MD}, v{T+9}
        s_mul_i32 s37, s45, 21504
        s_lshl_b32 s38, s44, 9
        s_add_u32 s37, s37, s38
        s_add_u32 s37, s37, {WS_H1}
        v_lshl_add_u32 v{T+10}, v1, 3, s37
        s_waitcnt vmcnt(14) lgkmcnt(0)
        s_add_u32 s32, s32, 0x9e3779b9
        v_lshlrev_b32 v{T+4}, 16, v{T}
        v_and_b32 v{T+5}, 0xffff0000, v{T}''')
        s.silu(T+4,T+4,T+6); s.silu(T+5,T+5,T+7)
        a(f'''v_cvt_pk_bf16_f32 v{T+4}, v{T+4}, v{T+4}
        v_cvt_pk_bf16_f32 v{T+5}, v{T+5}, v{T+5}
        ds_write_b64 v3, v[{T+4}:{T+5}] offset:{L_MT}
        ds_read_b128 v[{DUP}:{DUP+3}], v{T+1} offset:{L_MT}
        ds_read_b128 v[{DUP+4}:{DUP+7}], v{T+1} offset:{L_MT+16}
        ds_read_b128 v[{DUP+8}:{DUP+11}], v{T+1} offset:{L_MT+32}
        ds_read_b64 v[{DUP+12}:{DUP+13}], v{T+1} offset:{L_MT+48}
        s_waitcnt vmcnt(0) lgkmcnt(0)''')
        s.stamp(1)
        s.gemv_steps(D,A,DUP,14,MK,B)
        a(f'''ds_write_b128 v{T+8}, v[{D}:{D+3}] offset:{L_MD}
        ds_read2_b32 v[{T+4}:{T+5}], v{T+9} offset0:0 offset1:160
        s_waitcnt lgkmcnt(0)
        v_add_f32 v{T+4}, v{T+4}, v{T+5}
        v_mov_b32 v{T+5}, s32
        global_store_dwordx2 v{T+10}, v[{T+4}:{T+5}], s[30:31] sc1''')
        s.stamp(2)
        a('s_branch L_R_x0\nL_R_notm:')
        a('s_waitcnt lgkmcnt(0)\ns_add_u32 s32, s32, 0x9e3779b9')
        if s.prefetch:
            a(f'''s_cmp_eq_u32 s33, 2
            s_cbranch_scc0 L_R_nopf
            s_getpc_b64 s[36:37]
            L_pc:
            s_sub_u32 s36, s36, L_pc-{NAME}_kernel
            s_subb_u32 s37, s37, 0
            s_and_b32 s38, s35, 3
            s_lshl_b32 s38, s38, 12
            v_lshl_add_u32 v2, v1, 6, s38
            v_min_u32 v2, L_exit-{NAME}_kernel, v2
            global_load_dword v3, v2, s[36:37]
            L_R_nopf:''')
        a(f'''s_cmp_eq_u32 s33, 0
        s_cbranch_scc0 L_R_x0
        s_getreg_b32 s44, hwreg(HW_REG_XCC_ID, 0, 4)
        s_lshl_b32 s36, s34, 8
        s_lshl_b32 s37, s35, 3
        s_add_u32 s37, s37, s36
        s_add_u32 s37, s37, {WS_XT}
        v_mov_b32 v2, s37
        v_mov_b32 v4, s44
        v_mov_b32 v5, s32
        s_mov_b64 exec, 1
        global_store_dwordx2 v2, v[4:5], s[30:31] sc1
        s_mov_b64 exec, -1
        s_add_u32 s36, s36, {WS_XT}
        v_min_u32 v2, 23, v1
        v_lshl_add_u32 v2, v2, 3, s36
        s_lshl_b32 s36, s34, 11
        s_add_u32 s36, s36, {WS_H2}
        v_lshl_add_u32 v3, v1, 4, s36
        v_lshlrev_b32 v6, 3, v1
        s_barrier''')
        s.stamp(3)
        s.poll('''global_load_dwordx4 v[8:11], v3, s[30:31] sc1
        global_load_dwordx4 v[12:15], v3, s[30:31] offset:1024 sc1
        global_load_dwordx2 v[16:17], v2, s[30:31] sc1''',[9,11,13,15,17],20,s.sleepq)
        a(f'''v_cmp_ne_u32 vcc, s44, v16
        v_mov_b32 v9, v10
        v_mov_b32 v13, v14
        s_cmp_eq_u64 vcc, 0
        s_cselect_b32 s43, 1, 0
        ds_write_b64 v6, v[8:9] offset:{L_Q}
        ds_write_b64 v6, v[12:13] offset:{L_Q+512}
        v_mov_b32 v7, s43
        v_mov_b32 v8, 0
        ds_write_b32 v8, v7 offset:{L_FLAG}
        s_waitcnt lgkmcnt(0)''')
        s.stamp(4)
        if s.debug: a('s_mov_b32 s90, s42\ns_mov_b32 s92, s43')
        a('''s_branch L_R_x
        L_R_x0:
        s_cmp_ge_u32 s35, 16
        s_cbranch_scc1 L_R_end
        s_barrier
        L_R_x:
        s_barrier
        s_cmp_ge_u32 s35, 16
        s_cbranch_scc1 L_R_end''')
        A=8; G3=40; T=64; B=80; D=88
        a(f'''; ---------------- output projection: 32 rows x 112 columns of wo per wave ----------------
        s_lshl_b32 s36, s34, 9
        s_lshl_b32 s37, s35, 5
        s_add_u32 s36, s36, s37
        s_mul_i32 s36, s36, 896
        s_mul_i32 s37, s33, 224
        s_add_u32 s36, s36, s37
        v_lshrrev_b32 v2, 4, v1
        v_and_b32 v3, 15, v1
        v_min_u32 v3, 13, v3
        v_mul_u32_u24 v{T}, 1792, v2
        v_lshl_add_u32 v3, v3, 4, s36
        v_add_u32 v3, v3, v{T}''')
        for k in range(4):
            a(f'global_load_dwordx4 v[{A+4*k}:{A+4*k+3}], v3, s[12:13] {s.wnt}')
            a(f'global_load_dwordx4 v[{A+16+4*k}:{A+16+4*k+3}], v3, s[12:13] offset:896 {s.wnt}')
            if k<3: a('v_add_u32 v3, 7168, v3')
        a(f'v_mov_b32 v{T}, 0\nds_read_b32 v{T+1}, v{T} offset:{L_FLAG}')
        s.masks(MK)
        a(f'''s_lshl_b32 s36, s34, 4
        s_add_u32 s36, s36, s35
        s_mul_i32 s36, s36, 6144
        s_add_u32 s36, s36, {WS_H3+2048}
        v_bfe_u32 v3, v1, 2, 2
        v_lshlrev_b32 v3, 8, v3
        v_lshl_add_u32 v3, v2, 6, v3
        v_and_b32 v2, 3, v1
        v_lshl_add_u32 v3, v2, 4, v3
        v_add_u32 v3, s36, v3
        s_mul_i32 s36, s34, 57344
        s_add_u32 s44, s36, {WS_H35}
        s_mul_i32 s37, s33, {7*2048}
        s_lshl_b32 s38, s35, 7
        s_add_u32 s36, s44, s37
        s_add_u32 s36, s36, s38
        v_lshrrev_b32 v2, 3, v1
        v_lshlrev_b32 v2, 11, v2
        v_and_b32 v{T+2}, 7, v1
        v_lshl_add_u32 v2, v{T+2}, 4, v2
        v_add_u32 v2, s36, v2
        s_lshl_b32 s36, s35, 1
        s_add_u32 s45, s36, s33
        s_lshl_b32 s36, s45, 11
        s_add_u32 s36, s36, s44
        v_lshl_add_u32 v100, v1, 4, s36
        s_mul_i32 s36, s34, 3584
        s_lshl_b32 s37, s45, 7
        s_add_u32 s36, s36, s37
        s_add_u32 s36, s36, {WS_H4}
        v_lshl_add_u32 v101, v1, 4, s36
        s_mov_b32 s46, 0xff00ff00
        s_mov_b32 s47, 0xff00ff00
        s_waitcnt lgkmcnt(0)
        v_readfirstlane_b32 s43, v{T+1}
        s_barrier
        s_barrier''')
        s.stamp(5)
        s.poll('\n'.join(f'global_load_dwordx4 v[{G3+4*k}:{G3+4*k+3}], v3, s[30:31] offset:{1024*k-2048} sc1' for k in range(6)),[G3+4*k+3 for k in range(6)],T,s.sleep3)
        s.stamp(6)
        if s.debug: a('s_mov_b32 s88, s42')
        L=lambda k:G3+4*k+2
        a(f'''v_max3_f32 v{T}, v{L(0)}, v{L(1)}, v{L(2)}
        v_max3_f32 v{T+1}, v{L(3)}, v{L(4)}, v{L(5)}
        v_max_f32 v{T}, v{T}, v{T+1}
        v_max_f32_dpp v{T}, v{T}, v{T} row_ror:4 {DPPF}
        v_max_f32_dpp v{T}, v{T}, v{T} row_ror:8 {DPPF}''')
        for k in range(6): a(f'v_sub_f32 v{L(k)}, v{L(k)}, v{T}')
        for k in range(6): a(f'v_exp_f32 v{L(k)}, v{L(k)}')
        a(f'v_mul_f32 v{T+2}, v{G3}, v{L(0)}\nv_mul_f32 v{T+3}, v{G3+1}, v{L(0)}\nv_add_f32 v{T+1}, v{L(0)}, v{L(1)}')
        for k in range(1,6):
            a(f'v_fmac_f32 v{T+2}, v{G3+4*k}, v{L(k)}\nv_fmac_f32 v{T+3}, v{G3+4*k+1}, v{L(k)}')
            if k<5: a(f'v_add_f32 v{T+1}, v{T+1}, v{L(k+1)}')
        for k in (4,8):
            for r in (1,2,3): a(f'v_add_f32_dpp v{T+r}, v{T+r}, v{T+r} row_ror:{k} {DPPF}')
        a(f'''v_rcp_f32 v{T+1}, v{T+1}
        v_mul_f32 v{T+2}, v{T+2}, v{T+1}
        v_mul_f32 v{T+3}, v{T+3}, v{T+1}
        v_cvt_pk_bf16_f32 v{T+2}, v{T+2}, v{T+2}
        v_cvt_pk_bf16_f32 v{T+3}, v{T+3}, v{T+3}''')
        s.gemv_steps(D,A,None,8,MK,B,dpp=lambda k:(T+2+(k&1),k>>1))
        a(f'''v_mov_b32 v{T+6}, s32
        v_mov_b32 v{T+7}, s32
        v_cndmask_b32 v{T+4}, v{D}, v{D+2}, s[46:47]
        v_cndmask_b32 v{T+5}, v{D+1}, v{D+3}, s[46:47]
        s_mov_b32 exec_hi, 0x00ffffff''')
        s.store2(f'global_store_dwordx4 v2, v[{T+4}:{T+7}], s[30:31]')
        a('s_mov_b32 exec_hi, -1')
        s.stamp(7)
        a('''s_cmp_ge_u32 s33, 2
        s_cbranch_scc1 L_R_end
        s_cmp_ge_u32 s35, 14
        s_cbranch_scc1 L_R_end''')
        s.poll('global_load_dwordx4 v[8:11], v100, s[30:31] sc1\nglobal_load_dwordx4 v[12:15], v100, s[30:31] offset:1024 sc1',[10,14],16,s.sleep3)
        s.stamp(8)
        if s.debug: a('s_mov_b32 s86, s42')
        a(f'''v_pk_add_f32 v[8:9], v[8:9], v[12:13]
        v_add_f32_dpp v8, v8, v8 row_ror:8 {DPPF}
        v_add_f32_dpp v9, v9, v9 row_ror:8 {DPPF}
        v_mov_b32 v12, v8
        v_mov_b32 v13, v9
        v_permlane16_swap_b32 v12, v8
        v_permlane16_swap_b32 v13, v9
        v_pk_add_f32 v[8:9], v[8:9], v[12:13]
        v_mov_b32 v12, v8
        v_mov_b32 v13, v9
        v_permlane32_swap_b32 v12, v8
        v_permlane32_swap_b32 v13, v9
        v_pk_add_f32 v[8:9], v[8:9], v[12:13]
        s_mov_b64 exec, 0xff
        global_store_dwordx4 v101, v[8:11], s[30:31] sc1''')
        s.stamp(9)
        a('L_R_end:')
        s.end()
    def aux(s):
        a=s.a
        MK=4; A=8; A2=40; GT=72; DUP=104; B=112; D=120; T=124
        XC=140; LN=141; GA=142; SB=143; CB=144; TBW=145; TBR=146; DDW=147; DDR=148
        a(f'''L_aux:
        s_sub_u32 s44, s35, 24
        s_mul_i32 s45, s34, 7
        s_add_u32 s45, s45, s44
        v_lshrrev_b32 v2, 3, v1
        v_and_b32 v3, 7, v1
        v_lshlrev_b32 v3, 4, v3
        v_mov_b32 v162, {WS_H5}
        s_waitcnt lgkmcnt(0)
        s_load_dword s32, s[30:31], 0
        s_cmp_eq_u32 s33, 7
        s_cbranch_scc1 L_aux7
        s_lshl_b32 s46, s33, 6
        v_add_u32 v{T}, s46, v1
        v_lshlrev_b32 v{T+1}, 1, v{T}
        global_load_ushort v{XC}, v{T+1}, s[4:5]
        v_min_u32 v{T+1}, 55, v1
        v_lshlrev_b32 v{T+1}, 4, v{T+1}
        global_load_dwordx4 v[{GT}:{GT+3}], v{T+1}, s[4:5]
        s_lshl_b32 s36, s33, 19
        s_lshl_b32 s37, s34, 10
        s_add_u32 s36, s36, s37
        s_lshl_b32 s37, s44, 7
        s_add_u32 s36, s36, s37
        v_lshl_add_u32 v{T+1}, v2, 16, v3
        v_add_u32 v{T+1}, s36, v{T+1}''')
        for i in range(8):
            a(f'global_load_dwordx4 v[{A+4*i}:{A+4*i+3}], v{T+1}, s[10:11] {s.wnt}')
            if i<7: a(f'v_add_u32 v{T+1}, 8192, v{T+1}')
        s.masks(MK)
        a(f'''v_lshlrev_b32 v150, 3, v{T}
        v_add_u32 v150, {WS_H1}, v150
        v_add_u32 v151, 21504, v150
        v_add_u32 v152, 21504, v151
        v_add_u32 v153, 21504, v152
        s_lshl_b32 s36, s33, 8
        v_lshl_add_u32 v{TBW}, v1, 2, s36
        v_lshl_add_u32 v{TBR}, v2, 5, s36
        s_lshl_b32 s36, s33, 10
        v_lshl_add_u32 v{DDW}, v1, 4, s36
        v_lshlrev_b32 v149, 2, v{T}
        s_waitcnt vmcnt(8) lgkmcnt(0)
        s_add_u32 s32, s32, 0x9e3779b9
        v_lshlrev_b32 v{XC}, 16, v{XC}''')
        X=GT+4
        for r in range(4):
            a(f'v_lshlrev_b32 v{X+2*r}, 16, v{GT+r}\nv_and_b32 v{X+2*r+1}, 0xffff0000, v{GT+r}')
        a(f'v_cmp_gt_u32 s[48:49], 56, v1\nv_add_f32 v{T}, v{X}, v{X+1}')
        for r in range(2,8): a(f'v_add_f32 v{T}, v{T}, v{X+r}')
        a(f'v_cndmask_b32 v{T}, 0, v{T}, s[48:49]')
        s.wavesum(T,T+1)
        a(f'v_mul_f32 v{T}, {hex(f2u(1/448))}, v{T}')
        for r in range(8): a(f'v_sub_f32 v{X+r}, v{X+r}, v{T}')
        a(f'v_mul_f32 v{T+2}, v{X}, v{X}')
        for r in range(1,8): a(f'v_fmac_f32 v{T+2}, v{X+r}, v{X+r}')
        a(f'v_cndmask_b32 v{T+2}, 0, v{T+2}, s[48:49]')
        s.wavesum(T+2,T+1)
        a(f'v_mul_f32 v{T+2}, {hex(f2u(1/448))}, v{T+2}')
        s.lnfin(LN,XC,T,T+2,T+3)
        s.stamp(1)
        ld='\n'.join(f'global_load_dwordx2 v[{GT+4*q+2*sec}:{GT+4*q+2*sec+1}], v{150+q}, s[30:31] offset:{3584*sec} sc1' for q in range(4) for sec in range(2))
        s.poll(ld,[GT+2*i+1 for i in range(8)],T)
        s.stamp(2)
        if s.debug: a('s_mov_b32 s90, s42')
        a(f'''v_add_f32 v{T}, v{GT}, v{GT+4}
        v_add_f32 v{T+1}, v{GT+2}, v{GT+6}
        v_add_f32 v{T+2}, v{GT+8}, v{GT+12}
        v_add_f32 v{T+3}, v{GT+10}, v{GT+14}
        v_add_f32 v{T}, v{T}, v{T+2}
        v_add_f32 v{T+1}, v{T+1}, v{T+3}
        v_cvt_pk_bf16_f32 v{T}, v{T}, v{T+1}
        v_and_b32 v{T+1}, 0xffff0000, v{T}
        v_lshlrev_b32 v{T}, 16, v{T}
        v_add_f32 v{T+1}, 1.0, v{T+1}''')
        s.rnd(f'v{T+1}',f'v{T+1}')
        s.modulate_gemv(LN,T+1,T,T+2,TBW,TBR,DDW,DUP,A,MK,B,D)
        s.stamp(3)
        a(f'''s_cmp_eq_u32 s44, 7
        s_cbranch_scc1 L_aux_end''')
        for q in range(4): a(f'v_add_u32 v{150+q}, {3*3584}, v{150+q}\nv_add_u32 v{154+q}, {2*3584}, v{150+q}')
        ld='\n'.join(f'global_load_dwordx2 v[{GT+8*q+2*sec}:{GT+8*q+2*sec+1}], v{150+q}, s[30:31] offset:{3584*(sec-1)} sc1' for q in range(4) for sec in range(3))
        ld+='\n'+'\n'.join(f'global_load_dwordx2 v[{GT+8*q+6}:{GT+8*q+7}], v{154+q}, s[30:31] sc1' for q in range(4))
        s.poll(ld,[GT+2*i+1 for i in range(16)],T)
        s.stamp(4)
        a(f'''v_bfe_u32 v{T}, v1, 2, 1
        v_cmp_eq_u32 vcc, 1, v{T}
        v_mov_b32 v{T+2}, s16
        v_mov_b32 v{T+3}, s17
        v_mov_b32 v{T+4}, s18
        v_mov_b32 v{T+5}, s19
        v_cndmask_b32 v{T+2}, v{T+2}, v{T+4}, vcc
        v_cndmask_b32 v{T+3}, v{T+3}, v{T+5}, vcc
        s_mul_i32 s36, s33, {64*3584}
        s_lshl_b32 s37, s45, 6
        s_add_u32 s36, s36, s37
        s_add_u32 s36, s36, 3584
        v_mul_u32_u24 v{T+4}, {8*3584}, v2
        v_and_b32 v{T+5}, 3, v1
        v_lshlrev_b32 v{T+5}, 4, v{T+5}
        v_add3_u32 v{T+4}, v{T+4}, v{T+5}, s36
        v_mov_b32 v{T+5}, 0
        v_lshl_add_u64 v[{T+2}:{T+3}], v[{T+4}:{T+5}], 0, v[{T+2}:{T+3}]
        s_mov_b64 s[36:37], {3*3584}''')
        for i in range(8):
            a(f'global_load_dwordx4 v[{A+4*i}:{A+4*i+3}], v[{T+2}:{T+3}], off offset:{3584*(i%3-1)} {s.wnt}')
            if i%3==2: a(f'v_lshl_add_u64 v[{T+2}:{T+3}], v[{T+2}:{T+3}], 0, s[36:37]')
        for k,dst in enumerate((GA,SB,CB,T+6)):
            a(f'''v_add_f32 v{T}, v{GT+2*k}, v{GT+8+2*k}
            v_add_f32 v{T+1}, v{GT+16+2*k}, v{GT+24+2*k}
            v_add_f32 v{T}, v{T}, v{T+1}''')
            s.rnd(f'v{dst}',f'v{T}')
        a(f'v_add_f32 v{CB}, 1.0, v{CB}'); s.rnd(f'v{CB}',f'v{CB}')
        a(f'''ds_write_b32 v149, v{T+6} offset:{L_GB}
        s_cmp_lt_u32 s33, 4
        s_cbranch_scc1 L_aux_h4''')
        s.down_loads(A2,T)
        a(f'''L_aux_h4:
        s_lshl_b32 s36, s33, 9
        s_add_u32 s36, s36, {WS_H4+3584}
        v_lshrrev_b32 v{T}, 4, v1
        v_lshl_add_u32 v150, v{T}, 7, v3
        v_add_u32 v150, s36, v150
        v_add_u32 v151, {3*3584}, v150
        v_add_u32 v152, {3*3584}, v151
        v_lshrrev_b32 v{T}, 5, v1
        s_lshl_b32 s36, s33, 2
        v_lshl_add_u32 v153, v{T}, 5, s36
        v_mov_b32 v154, 0
        s_mov_b32 s46, 0xff00ff00
        s_mov_b32 s47, 0xff00ff00''')
        s.stamp(5)
        ld='\n'.join(f'global_load_dwordx4 v[{GT+4*i}:{GT+4*i+3}], v{150+i//3}, s[30:31] offset:{3584*(i%3-1)} sc1' for i in range(8))
        s.poll(ld,[GT+4*i+2 for i in range(8)],T,s.sleep4)
        s.stamp(6)
        if s.debug: a('s_mov_b32 s88, s42')
        P=lambda i:f'v[{GT+4*i}:{GT+4*i+1}]'
        for (x,y) in ((0,1),(2,3),(4,5),(6,7),(0,2),(4,6),(0,4)): a(f'v_pk_add_f32 {P(x)}, {P(x)}, {P(y)}')
        a(f'v_cndmask_b32 v{T}, v{GT}, v{GT+1}, s[46:47]')
        s.rnd(f'v{T}',f'v{T}')
        a(f'v_mul_f32 v{T}, v{GA}, v{T}'); s.rnd(f'v{T}',f'v{T}')
        a(f'v_add_f32 v{T}, v{XC}, v{T}'); s.rnd(f'v{XC}',f'v{T}')
        a(f'v_mul_f32 v{T+1}, v{XC}, v{XC}\nv_add_f32_dpp v{T}, v{XC}, v{XC} row_ror:1 {DPPF}\nv_add_f32_dpp v{T+1}, v{T+1}, v{T+1} row_ror:1 {DPPF}\nds_write_b32 v149, v{XC} offset:{L_X1}')
        for k in (2,4,8): a(f'v_add_f32_dpp v{T}, v{T}, v{T} row_ror:{k} {DPPF}\nv_add_f32_dpp v{T+1}, v{T+1}, v{T+1} row_ror:{k} {DPPF}')
        a(f'v_permlane32_swap_b32 v{T}, v{T+1}\nv_add_f32 v{T}, v{T}, v{T+1}')
        s.bfly('v_add_f32',T,T+1,16)
        a(f'''ds_write_b32 v153, v{T} offset:{L_ST}
        s_waitcnt lgkmcnt(0)
        s_barrier
        ds_read_b128 v[{GT}:{GT+3}], v154 offset:{L_ST}
        ds_read_b128 v[{GT+8}:{GT+11}], v154 offset:{L_ST+32}
        ds_read_b128 v[{GT+4}:{GT+7}], v154 offset:{L_ST+16}
        ds_read_b128 v[{GT+12}:{GT+15}], v154 offset:{L_ST+48}
        s_waitcnt lgkmcnt(0)
        v_pk_add_f32 v[{GT}:{GT+1}], v[{GT}:{GT+1}], v[{GT+2}:{GT+3}]
        v_pk_add_f32 v[{GT+8}:{GT+9}], v[{GT+8}:{GT+9}], v[{GT+10}:{GT+11}]
        v_pk_add_f32 v[{GT}:{GT+1}], v[{GT}:{GT+1}], v[{GT+4}:{GT+5}]
        v_pk_add_f32 v[{GT+8}:{GT+9}], v[{GT+8}:{GT+9}], v[{GT+12}:{GT+13}]
        v_add_f32 v{GT}, v{GT}, v{GT+1}
        v_add_f32 v{GT+8}, v{GT+8}, v{GT+9}
        v_add_f32 v{T}, v{GT}, v{GT+6}
        v_add_f32 v{T+2}, v{GT+8}, v{GT+14}
        v_mul_f32 v{T}, {hex(f2u(1/448))}, v{T}
        v_mul_f32 v{T+2}, {hex(f2u(1/448))}, v{T+2}
        v_fma_f32 v{T+2}, -v{T}, v{T}, v{T+2}
        v_max_f32 v{T+2}, 0, v{T+2}''')
        s.lnfin(LN,XC,T,T+2,T+3)
        s.stamp(7)
        s.modulate_gemv(LN,CB,SB,T+2,TBW,TBR,DDW,DUP,A,MK,B,D)
        s.stamp(8)
        a(f'''s_cmp_ge_u32 s33, 4
        s_cbranch_scc1 L_aux_down
        s_cmp_lg_u32 s33, 0
        s_cbranch_scc1 L_aux_end
        s_bitcmp1_b32 s45, 0
        s_cbranch_scc1 L_aux_end
        s_lshr_b32 s46, s45, 1
        s_lshl_b32 s36, s46, 6
        v_lshrrev_b32 v{T}, 2, v3
        v_add_u32 v{T}, s36, v{T}
        v_add_u32 v{T+1}, {L_GB}, v{T}
        v_add_u32 v{T}, {L_X1}, v{T}
        ds_read2_b32 v[{T+2}:{T+3}], v{T} offset0:0 offset1:8
        ds_read2_b32 v[{T+4}:{T+5}], v{T+1} offset0:0 offset1:8
        s_mul_i32 s36, s46, 7168
        s_add_u32 s36, s36, {WS_H5+3072}
        v_lshl_add_u32 v150, v1, 4, s36
        s_lshl_b32 s36, s46, 5
        v_lshrrev_b32 v151, 3, v3
        v_add_u32 v151, s36, v151
        s_waitcnt lgkmcnt(0)''')
        ld='\n'.join(f'global_load_dwordx4 v[{GT+4*i}:{GT+4*i+3}], v150, s[30:31] offset:{1024*(i-3)} sc1' for i in range(7))
        s.poll(ld,[GT+4*i+2 for i in range(7)],T+6,s.sleep5)
        s.stamp(9)
        if s.debug: a('s_mov_b32 s86, s42')
        for (x,y) in ((0,1),(2,3),(4,5),(0,2),(4,6),(0,4)): a(f'v_pk_add_f32 {P(x)}, {P(x)}, {P(y)}')
        a(f'''v_add_f32_dpp v{GT}, v{GT}, v{GT} row_ror:8 {DPPF}
        v_add_f32_dpp v{GT+1}, v{GT+1}, v{GT+1} row_ror:8 {DPPF}
        v_mov_b32 v{GT+2}, v{GT}
        v_mov_b32 v{GT+3}, v{GT+1}
        v_permlane16_swap_b32 v{GT+2}, v{GT}
        v_permlane16_swap_b32 v{GT+3}, v{GT+1}
        v_pk_add_f32 v[{GT}:{GT+1}], v[{GT}:{GT+1}], v[{GT+2}:{GT+3}]
        v_mov_b32 v{GT+2}, v{GT}
        v_mov_b32 v{GT+3}, v{GT+1}
        v_permlane32_swap_b32 v{GT+2}, v{GT}
        v_permlane32_swap_b32 v{GT+3}, v{GT+1}
        v_pk_add_f32 v[{GT}:{GT+1}], v[{GT}:{GT+1}], v[{GT+2}:{GT+3}]
        v_cvt_pk_bf16_f32 v{GT}, v{GT}, v{GT+1}
        v_and_b32 v{GT+1}, 0xffff0000, v{GT}
        v_lshlrev_b32 v{GT}, 16, v{GT}
        v_pk_mul_f32 v[{GT}:{GT+1}], v[{GT}:{GT+1}], v[{T+4}:{T+5}]
        v_cvt_pk_bf16_f32 v{GT}, v{GT}, v{GT+1}
        v_and_b32 v{GT+1}, 0xffff0000, v{GT}
        v_lshlrev_b32 v{GT}, 16, v{GT}
        v_pk_add_f32 v[{GT}:{GT+1}], v[{GT}:{GT+1}], v[{T+2}:{T+3}]
        v_cvt_pk_bf16_f32 v{GT}, v{GT}, v{GT+1}
        s_mov_b64 exec, 0xff
        global_store_short v151, v{GT}, s[26:27]
        global_store_short_d16_hi v151, v{GT}, s[26:27] offset:16
        s_cmp_lg_u32 s46, 0
        s_cbranch_scc1 L_aux_end
        s_mov_b64 exec, 1
        v_mov_b32 v{T}, 0
        v_mov_b32 v{T+1}, s32
        global_store_dword v{T}, v{T+1}, s[30:31] sc1''')
        if s.probe:
            a(f'''s_mov_b32 s42, 0
            L_probe:
            s_memrealtime s[60:61]
            s_add_u32 s42, s42, 1
            s_waitcnt lgkmcnt(0)
            s_sub_u32 s60, s60, s62
            s_cmp_ge_u32 s60, {s.probe}
            s_cbranch_scc1 L_aux_end
            s_cmp_lt_u32 s42, 100000
            s_cbranch_scc1 L_probe''')
        a('s_branch L_aux_end')
        a(f'''L_aux7:''')
        s.masks(MK)
        s.ddr_addr(DDR,T)
        a(f'''s_lshl_b32 s36, s34, 11
        s_lshl_b32 s37, s44, 8
        s_add_u32 s36, s36, s37
        s_add_u32 s36, s36, {WS_H2}
        v_lshl_add_u32 v150, v1, 2, s36
        s_waitcnt lgkmcnt(0)
        s_add_u32 s32, s32, 0x9e3779b9
        s_barrier''')
        s.dd_sum(GT,DDR)
        a(f'''v_mov_b32_dpp v{GT+1}, v{GT} quad_perm:[1,1,3,3] {DPPF}
        v_cvt_pk_bf16_f32 v{GT}, v{GT}, v{GT+1}
        v_mov_b32 v{GT+1}, s32
        s_mov_b32 exec_lo, 0x55555555
        s_mov_b32 exec_hi, 0x55555555
        global_store_dwordx2 v150, v[{GT}:{GT+1}], s[30:31] sc1
        s_mov_b64 exec, -1''')
        s.stamp(3)
        a('''s_cmp_eq_u32 s44, 7
        s_cbranch_scc1 L_aux_end''')
        s.down_loads(A2,T)
        a('''s_mov_b32 s46, 0xff00ff00
        s_mov_b32 s47, 0xff00ff00
        s_barrier
        s_barrier
        L_aux_down:''')
        s.dd_sum(GT,DDR)
        s.rnd(f'v{GT}',f'v{GT}')
        a(f'v_mov_b32 v{GT+1}, v{GT}\nv_permlane32_swap_b32 v{GT}, v{GT+1}')
        s.silu(GT,GT,GT+2); s.rnd(f'v{GT}',f'v{GT}')
        a(f'''v_mul_f32 v{GT}, v{GT}, v{GT+1}
        v_cvt_pk_bf16_f32 v{GT}, v{GT}, v{GT}
        ds_write_b32 v160, v{GT}
        ds_read_b128 v[{DUP}:{DUP+3}], v161
        ds_read_b128 v[{DUP+4}:{DUP+7}], v161 offset:16
        s_waitcnt vmcnt(0) lgkmcnt(0)''')
        s.stamp(10)
        s.gemv_steps(D,A2,DUP,8,MK,B)
        a(f'''v_mov_b32 v{T+6}, s32
        v_mov_b32 v{T+7}, s32
        v_cndmask_b32 v{T+4}, v{D}, v{D+2}, s[46:47]
        v_cndmask_b32 v{T+5}, v{D+1}, v{D+3}, s[46:47]
        s_mov_b32 exec_hi, 0x00ffffff
        global_store_dwordx4 v162, v[{T+4}:{T+7}], s[30:31] sc1''')
        s.stamp(11)
        a('L_aux_end:')
        s.end()
    def ddr_addr(s,DDR,T):
        s.a(f'''v_lshrrev_b32 v{DDR}, 5, v1
        v_lshl_add_u32 v{DDR}, v{DDR}, 8, v3
        v_bfe_u32 v{T}, v1, 3, 2
        v_lshl_add_u32 v{DDR}, v{T}, 2, v{DDR}
        v_add_u32 v{DDR}, {L_DD}, v{DDR}''')
        for w in range(1,7): s.a(f'v_add_u32 v{164+w}, {1024*w}, v{DDR}')
    def dd_sum(s,GT,DDR):
        a=s.a
        for w in range(7): a(f'ds_read2_b32 v[{GT+2*w}:{GT+2*w+1}], v{DDR if w==0 else 164+w} offset0:0 offset1:160')
        a('s_waitcnt lgkmcnt(0)')
        P=lambda i:f'v[{GT+2*i}:{GT+2*i+1}]'
        for (x,y) in ((0,1),(2,3),(4,5),(0,2),(4,6),(0,4)): a(f'v_pk_add_f32 {P(x)}, {P(x)}, {P(y)}')
        a(f'v_add_f32 v{GT}, v{GT}, v{GT+1}')
    def down_loads(s,A2,T):
        a=s.a
        a(f'''s_sub_u32 s38, s33, 4
        s_mul_i32 s36, s45, {32*896}
        s_mul_i32 s37, s38, 224
        s_add_u32 s36, s36, s37
        s_add_u32 s36, s36, {3*896}
        v_lshrrev_b32 v{T}, 4, v1
        v_mul_u32_u24 v{T+1}, {8*896}, v{T}
        v_and_b32 v{T+2}, 15, v1
        v_min_u32 v{T+2}, 13, v{T+2}
        v_lshlrev_b32 v{T+2}, 4, v{T+2}
        v_add3_u32 v{T+1}, v{T+1}, v{T+2}, s36''')
        for t in range(8): a(f'global_load_dwordx4 v[{A2+4*t}:{A2+4*t+3}], v{T+1}, s[20:21] offset:{896*(t-3)} {s.wnt}')
        a(f'''s_lshl_b32 s36, s38, 7
        s_add_u32 s36, s36, {L_ACT}
        v_and_b32 v{T+2}, 31, v1
        v_lshl_add_u32 v160, v{T+2}, 2, s36
        v_lshl_add_u32 v161, v{T}, 5, s36
        s_mul_i32 s36, s38, {7*7168}
        s_lshl_b32 s37, s45, 7
        s_add_u32 s36, s36, s37
        s_add_u32 s36, s36, {WS_H5}
        v_mul_u32_u24 v162, 7168, v2
        v_add3_u32 v162, v162, v3, s36''')
        s.ddr_addr(148,T)
    def lnfin(s,LN,X,MU,VAR,t):
        a=s.a
        a(f'''v_cvt_pk_bf16_f32 v{MU}, v{MU}, v{VAR}
        v_and_b32 v{VAR}, 0xffff0000, v{MU}
        v_lshlrev_b32 v{MU}, 16, v{MU}
        v_add_f32 v{VAR}, {hex(f2u(1e-5))}, v{VAR}
        v_sub_f32 v{MU}, v{X}, v{MU}
        v_cvt_pk_bf16_f32 v{MU}, v{MU}, v{VAR}
        v_and_b32 v{VAR}, 0xffff0000, v{MU}
        v_sqrt_f32 v{VAR}, v{VAR}
        v_lshlrev_b32 v{MU}, 16, v{MU}''')
        s.rnd(f'v{VAR}',f'v{VAR}')
        a(f'v_rcp_f32 v{VAR}, v{VAR}\nv_mul_f32 v{LN}, v{MU}, v{VAR}')
        s.rnd(f'v{LN}',f'v{LN}')
    def modulate_gemv(s,LN,SC,SH,t,TBW,TBR,DDW,DUP,A,MK,B,D):
        a=s.a
        a(f'v_mul_f32 v{t}, v{LN}, v{SC}'); s.rnd(f'v{t}',f'v{t}')
        a(f'''v_add_f32 v{t}, v{t}, v{SH}
        v_cvt_pk_bf16_f32 v{t}, v{t}, v{t}
        ds_write_b32 v{TBW}, v{t} offset:{L_TB}
        ds_read_b128 v[{DUP}:{DUP+3}], v{TBR} offset:{L_TB}
        ds_read_b128 v[{DUP+4}:{DUP+7}], v{TBR} offset:{L_TB+16}
        s_waitcnt lgkmcnt(0)''')
        s.gemv_steps(D,A,DUP,8,MK,B)
        a(f'''ds_write_b128 v{DDW}, v[{D}:{D+3}] offset:{L_DD}
        s_waitcnt lgkmcnt(0)
        s_barrier''')
    def build(s):
        s.prologue(); s.awave(); s.rwave(); s.aux()
        s.a('L_exit:\ns_endpgm')
        body=pad(s.a.text())
        hdr=open('cdna_kernels/'+NAME+'.s.ref').read().split('; Override launch')[0]
        return f'''{hdr}; One persistent launch, one 8-wave workgroup per CU. Generated by my own script (work/gen.py).
; @launch grid=(256,1,1) block=(512,1,1) lds=16384
.amdgcn_target "amdgcn-amd-amdhsa--gfx950"
.text
.globl {NAME}_kernel
.p2align 8
.type {NAME}_kernel,@function
{NAME}_kernel:
{body}
.section .rodata,"a"
.p2align 6
.amdhsa_kernel {NAME}_kernel
  .amdhsa_next_free_vgpr 256
  .amdhsa_next_free_sgpr 102
  .amdhsa_accum_offset 256
  .amdhsa_group_segment_fixed_size 0
  .amdhsa_kernarg_size 112
  .amdhsa_user_sgpr_count 2
  .amdhsa_user_sgpr_kernarg_segment_ptr 1
  .amdhsa_system_sgpr_workgroup_id_x 1
  .amdhsa_float_denorm_mode_32 3
.end_amdhsa_kernel
'''
if __name__=='__main__':
    out=sys.argv[1]
    kw={}
    for x in sys.argv[2:]:
        k,v=x.split('=')
        kw[k]=int(v) if v.lstrip('-').isdigit() else v
    open(out,'w').write(G(**kw).build())
```

```python
import sys
from asmgen import Asm, NAME
from hazard import pad

STAMP_OFF=200*1024*1024
WS_XT =0x400
WS_H2 =0x1000
WS_H4 =0x8000
WS_H1 =0x10000
WS_H5 =0x28000
WS_H35=0x60000
WS_H3 =0xD0000
L_Q=0; L_MX=1024; L_LS=1056; L_FLAG=1088; L_P=2048; L_MT=10240; L_MD=11264
L_TB=0; L_DD=2048; L_ST=9216; L_X1=9344; L_GB=11136; L_ACT=12928
LOG2E=1.4426950408889634
import struct
def f2u(x): return struct.unpack('<I',struct.pack('<f',x))[0]
DPPF='row_mask:0xf bank_mask:0xf'

class G:
    DBG=[(0*8+4,0,[0,1,2,3,6]),(0*8+1,5,[1,2]),(0*8+0,7,[4,6,7,9]),(192*8+0,11,[0,1,2,3,4,5,6,7,8,9,15]),(192*8+7,22,[3,10,11]),(7*8+4,25,[0,2,6]),(199*8+0,28,[0,6]),(241*8+0,30,[0,15])]
    def __init__(s, debug=False, win=3, nt='nt', local=True, limit=200000, prefetch=True, prewarm=True, wnt='nt', sleep4=0, sleep5=0, sleep3=0, sleepq=0, dbgout=0, probe=0, pr=''):
        s.a=Asm(); s.debug=debug; s.win=win; s.nt=nt; s.local=local; s.limit=limit; s.prefetch=prefetch; s.prewarm=prewarm
        s.dbgout=dbgout; s.probe=probe; s.pr=pr; s.role='P'; s.wnt=wnt; s.sleep4=sleep4; s.sleep5=sleep5; s.sleep3=sleep3; s.sleepq=sleepq
    def stamp(s,i):
        if s.pr==f'{s.role}{i}': s.a('s_memrealtime s[62:63]')
        if s.debug: s.a(f's_memrealtime s[{64+2*i}:{65+2*i}]')
    def end(s):
        a=s.a
        if s.pr:
            lp=a.label('prb'); dn=a.label('prd')
            a(f'''s_waitcnt lgkmcnt(0)
            s_cmp_eq_u64 s[62:63], 0
            s_cbranch_scc1 {dn}
            s_mov_b32 s42, 0
            {lp}:
            s_sleep 2
            s_memrealtime s[60:61]
            s_add_u32 s42, s42, 1
            s_waitcnt lgkmcnt(0)
            s_sub_u32 s60, s60, s62
            s_cmp_ge_u32 s60, 2000
            s_cbranch_scc1 {dn}
            s_cmp_lt_u32 s42, 100000
            s_cbranch_scc1 {lp}
            {dn}:''')
        if s.debug:
            a('s_memrealtime s[94:95]\ns_waitcnt lgkmcnt(0)\ns_mov_b64 exec, -1\nv_mov_b32 v2, 0')
            for i in range(16): a(f'v_writelane_b32 v2, s{64+2*i}, {i}')
            a(f'''s_lshl_b32 s36, s2, 3
            s_add_u32 s36, s36, s33
            s_lshl_b32 s36, s36, 6
            s_add_u32 s36, s36, {STAMP_OFF}
            v_lshl_add_u32 v3, v1, 2, s36
            s_mov_b64 exec, 0xffff
            global_store_dword v3, v2, s[30:31]''')
            if s.dbgout:
                for key,first,idx in s.DBG:
                    l=a.label('dbg')
                    a(f's_lshl_b32 s36, s2, 3\ns_add_u32 s36, s36, s33\ns_cmp_lg_u32 s36, {key}\ns_cbranch_scc1 {l}\ns_mov_b64 exec, -1\nv_mov_b32 v3, 0\ns_mov_b64 exec, 1')
                    for n,i in enumerate(idx):
                        a(f'v_mov_b32 v2, s{64+2*i}\nv_mov_b32 v3, {2*(first+n)}\nglobal_store_short v3, v2, s[28:29]')
                    a(f'{l}:')
        a('s_endpgm')
    def rnd(s,dst,src,tmp=None):
        t=tmp or dst
        s.a(f'v_cvt_pk_bf16_f32 {t}, {src}, {src}\nv_and_b32 {dst}, 0xffff0000, {t}')
    def masks(s,r):
        a=s.a
        a(f'''v_and_b32 v{r}, 1, v1
        v_lshlrev_b32 v{r}, 4, v{r}
        v_mov_b32 v{r+1}, 0xffff
        v_lshlrev_b32 v{r+3}, v{r}, v{r+1}
        v_bfe_u32 v{r}, v1, 1, 2
        v_cmp_eq_u32 vcc, 1, v{r}
        v_cmp_eq_u32 s[36:37], 2, v{r}
        v_cmp_eq_u32 s[38:39], 3, v{r}
        v_cmp_eq_u32 s[40:41], 0, v{r}
        v_cndmask_b32 v{r+1}, 0, v{r+3}, vcc
        v_cndmask_b32 v{r+2}, 0, v{r+3}, s[36:37]
        v_cndmask_b32 v{r}, 0, v{r+3}, s[40:41]
        v_cndmask_b32 v{r+3}, 0, v{r+3}, s[38:39]''')
    def tagcheck(s,tags,t,pre=None):
        a=s.a; outs=[]; i=0; k=t
        while i<len(tags):
            if i+1<len(tags): a(f'v_bitop3_b32 v{k}, v{tags[i]}, v{tags[i+1]}, s32 bitop3:0x7e'); i+=2
            else: a(f'v_xor_b32 v{k}, s32, v{tags[i]}'); i+=1
            outs.append(k); k+=1
        while len(outs)>1:
            if len(outs)>=3: a(f'v_or3_b32 v{outs[0]}, v{outs[0]}, v{outs[1]}, v{outs[2]}'); outs=[outs[0]]+outs[3:]
            else: a(f'v_or_b32 v{outs[0]}, v{outs[0]}, v{outs[1]}'); outs=[outs[0]]
        a(f'v_cmp_ne_u32 vcc, 0, v{outs[0]}')
    def poll(s,loads,tags,t,sleep=0):
        a=s.a; lp=a.label('poll'); dn=a.label('pdone')
        a(f's_mov_b32 s42, 0\n{lp}:')
        a(loads); a('s_waitcnt vmcnt(0)')
        s.tagcheck(tags,t)
        a(f's_cbranch_vccz {dn}')
        if sleep: a(f's_sleep {sleep}')
        a(f's_add_u32 s42, s42, 1\ns_cmp_lt_u32 s42, {s.limit}\ns_cbranch_scc1 {lp}\n{dn}:')
    def gemv_steps(s,D,A,dup,n,mk,B,dpp=None):
        a=s.a
        for i in range(n):
            b=B+4*(i&1)
            for r in range(4):
                if dpp: a(f'v_and_b32_dpp v{b+r}, v{dpp(i)[0]}, v{mk+r} quad_perm:[{dpp(i)[1]},{dpp(i)[1]},{dpp(i)[1]},{dpp(i)[1]}] {DPPF}')
                else: a(f'v_and_b32 v{b+r}, v{dup+i}, v{mk+r}')
            if i>0:
                j=i-1; bj=B+4*(j&1)
                a(f'v_mfma_f32_16x16x32_bf16 v[{D}:{D+3}], v[{A+4*j}:{A+4*j+3}], v[{bj}:{bj+3}], {"0" if j==0 else f"v[{D}:{D+3}]"}')
        j=n-1; bj=B+4*(j&1)
        a(f'v_mfma_f32_16x16x32_bf16 v[{D}:{D+3}], v[{A+4*j}:{A+4*j+3}], v[{bj}:{bj+3}], v[{D}:{D+3}]')
    def bfly(s,op,v,t,which):
        s.a(f'v_mov_b32 v{t}, v{v}\nv_permlane{which}_swap_b32 v{t}, v{v}\n{op} v{v}, v{v}, v{t}')
    def wavesum(s,v,t):
        for k in (1,2,4,8): s.a(f'v_add_f32_dpp v{v}, v{v}, v{v} row_ror:{k} {DPPF}')
        s.bfly('v_add_f32',v,t,16); s.bfly('v_add_f32',v,t,32)
    def silu(s,dst,x,t):
        s.a(f'''v_mul_f32 v{t}, {hex(f2u(-LOG2E))}, v{x}
        v_exp_f32 v{t}, v{t}
        v_add_f32 v{t}, 1.0, v{t}
        v_rcp_f32 v{t}, v{t}
        v_mul_f32 v{dst}, v{x}, v{t}''')
    def store2(s,ins):
        a=s.a
        if not s.local: a(ins+' sc1'); return
        l1=a.label('st'); l2=a.label('st')
        a(f's_cmp_eq_u32 s43, 0\ns_cbranch_scc1 {l1}\n{ins}\ns_branch {l2}\n{l1}:\n{ins} sc1\n{l2}:')

    def prologue(s):
        a=s.a
        if s.debug:
            for i in range(64,96,2): a(f's_mov_b64 s[{i}:{i+1}], 0')
        if s.pr: a('s_mov_b64 s[62:63], 0')
        s.stamp(0)
        if s.probe: a('s_memrealtime s[62:63]')
        a('''s_cmp_ge_u32 s2, 256
        s_cbranch_scc1 L_exit
        s_load_dwordx4 s[28:31], s[0:1], 96
        s_load_dwordx16 s[4:19], s[0:1], 0
        s_load_dwordx8 s[20:27], s[0:1], 64
        v_lshrrev_b32 v2, 6, v0
        v_and_b32 v1, 63, v0
        s_and_b32 s34, s2, 7
        s_lshr_b32 s35, s2, 3
        v_readfirstlane_b32 s33, v2
        s_cmp_ge_u32 s35, 24
        s_cbranch_scc1 L_aux
        s_cmp_ge_u32 s33, 4
        s_cbranch_scc0 L_R''')
    def awave(s):
        a=s.a; NG=11; s.role='A'
        K=8; V=K+8*NG; D=V+8*NG
        S=200; Q=212; MK=220; O=224; T=232
        vK=2; vV=3
        a(f'''; ---------------- attention wave ----------------
        s_sub_u32 s44, s33, 4
        s_mul_i32 s36, s44, 24
        s_add_u32 s45, s36, s35
        s_lshl_b32 s37, s34, 23
        s_lshl_b32 s38, s45, 11
        s_add_u32 s37, s37, s38
        s_add_u32 s37, s37, {12288*512}
        v_lshrrev_b32 v4, 4, v1
        v_and_b32 v5, 15, v1
        v_lshlrev_b32 v{vV}, 9, v4
        v_lshl_add_u32 v{vV}, v5, 4, v{vV}
        v_and_b32 v6, 3, v1
        v_lshlrev_b32 v6, 4, v6
        v_lshl_add_u32 v6, v4, 6, v6
        v_lshrrev_b32 v5, 2, v5
        v_lshl_add_u32 v{vK}, v5, 9, v6
        s_waitcnt lgkmcnt(0)
        s_add_u32 s6, s6, s37
        s_addc_u32 s7, s7, 0
        s_add_u32 s8, s8, s37
        s_addc_u32 s9, s9, 0
        s_load_dword s32, s[30:31], 0''')
        n=[0]
        def pair(reg,voff,base):
            if n[0]>=s.win: a(f's_waitcnt vmcnt({2*(s.win-1)})')
            a(f'global_load_dwordx4 v[{reg}:{reg+3}], v{voff}, {base} {s.nt}')
            a(f'global_load_dwordx4 v[{reg+4}:{reg+7}], v{voff}, {base} offset:256 {s.nt}')
            n[0]+=1
        for (R,vo,base,nm) in ((K,vK,'s[6:7]','K'),(V,vV,'s[8:9]','V')):
            sk=a.label('skip')
            a(f's_cmp_ge_u32 s45, 64\ns_cbranch_scc1 {sk}\nv_add_u32 v7, {10*196608}, v{vo}')
            pair(R+80,7,base)
            a(f'{sk}:')
            for i in range(10):
                pair(R+8*i,vo,base)
                if i<9: a(f'v_add_u32 v{vo}, {196608}, v{vo}')
                if nm=='K' and i==2:
                    s.masks(MK)
                    sk2=a.label('z')
                    a(f's_cmp_lt_u32 s45, 64\ns_cbranch_scc1 {sk2}')
                    for r in range(8): a(f'v_mov_b32 v{V+80+r}, 0')
                    a(f'{sk2}:')
                    a(f'''v_bfe_u32 v5, v1, 3, 1
                    v_lshl_add_u32 v{T+8}, v5, 9, v6
                    s_lshl_b32 s36, s44, 2
                    v_lshl_add_u32 v{T+9}, v5, 4, s36
                    v_lshlrev_b32 v{T+10}, 4, v5
                    s_lshl_b32 s36, s44, 11
                    s_add_u32 s36, s36, {L_P}
                    v_lshl_add_u32 v{T+11}, v1, 4, s36
                    s_and_b32 s36, s44, 1
                    s_lshl_b32 s36, s36, 10
                    s_lshr_b32 s46, s44, 1
                    s_lshl_b32 s37, s46, 7
                    s_add_u32 s36, s36, s37
                    s_add_u32 s36, s36, {L_P}
                    v_and_b32 v5, 15, v1
                    v_lshl_add_u32 v{T+12}, v5, 3, s36
                    v_lshl_add_u32 v{T+12}, v4, 8, v{T+12}
                    s_lshl_b32 s36, s34, 4
                    s_lshl_b32 s37, s44, 2
                    s_add_u32 s36, s36, s37
                    s_mul_i32 s36, s36, 6144
                    s_lshl_b32 s37, s35, 8
                    s_add_u32 s36, s36, s37
                    s_add_u32 s36, s36, {WS_H3}
                    v_mul_u32_u24 v{T+13}, 6144, v4
                    v_lshl_add_u32 v{T+13}, v5, 4, v{T+13}
                    v_add_u32 v{T+13}, s36, v{T+13}
                    s_lshl_b32 s36, s46, 4
                    v_mov_b32 v{T+14}, s36
                    s_waitcnt lgkmcnt(0)
                    s_add_u32 s32, s32, 0x9e3779b9''')
            if nm=='K':
                s.stamp(1); a('s_barrier')
        s.stamp(2)
        a('s_barrier')
        s.stamp(3)
        a(f'''ds_read_b128 v[{Q}:{Q+3}], v{T+8} offset:{L_Q}
        ds_read_b128 v[{Q+4}:{Q+7}], v{T+8} offset:{L_Q+256}
        v_mov_b32 v{T}, 0
        ds_read_b32 v{T+1}, v{T} offset:{L_FLAG}
        s_waitcnt lgkmcnt(0)
        v_readfirstlane_b32 s43, v{T+1}''')
        def diag(i):
            d=D+4*(i%4)
            a(f'''v_mov_b32_dpp v{S+i}, v{d} quad_perm:[0,0,0,0] {DPPF}
            v_add_f32_dpp v{S+i}, v{d+1}, v{S+i} quad_perm:[1,1,1,1] {DPPF}
            v_add_f32_dpp v{S+i}, v{d+2}, v{S+i} quad_perm:[2,2,2,2] {DPPF}
            v_add_f32_dpp v{S+i}, v{d+3}, v{S+i} quad_perm:[3,3,3,3] {DPPF}''')
        for i in range(NG):
            d=D+4*(i%4)
            a(f'v_mfma_f32_16x16x32_bf16 v[{d}:{d+3}], v[{K+8*i}:{K+8*i+3}], v[{Q}:{Q+3}], 0')
            a(f'v_mfma_f32_16x16x32_bf16 v[{d}:{d+3}], v[{K+8*i+4}:{K+8*i+7}], v[{Q+4}:{Q+7}], v[{d}:{d+3}]')
            if i>=2: diag(i-2)
        diag(NG-2); diag(NG-1)
        sk=a.label('inf')
        a(f's_cmp_lt_u32 s45, 64\ns_cbranch_scc1 {sk}\nv_mov_b32 v{S+10}, 0xff800000\n{sk}:')
        for i in range(0,NG,2):
            j=min(i+1,NG-1)
            a(f'v_cvt_pk_bf16_f32 v{T}, v{S+i}, v{S+j}\nv_lshlrev_b32 v{S+i}, 16, v{T}')
            if j!=i: a(f'v_and_b32 v{S+j}, 0xffff0000, v{T}')
        a(f'''v_max3_f32 v{T}, v{S}, v{S+1}, v{S+2}
        v_max3_f32 v{T+1}, v{S+3}, v{S+4}, v{S+5}
        v_max3_f32 v{T+2}, v{S+6}, v{S+7}, v{S+8}
        v_max3_f32 v{T}, v{T}, v{S+9}, v{S+10}
        v_max3_f32 v{T}, v{T}, v{T+1}, v{T+2}''')
        s.bfly('v_max_f32',T,T+1,16); s.bfly('v_max_f32',T,T+1,32)
        a(f'''ds_write_b32 v{T+9}, v{T} offset:{L_MX}
        s_waitcnt lgkmcnt(0)
        s_barrier
        ds_read_b128 v[{T}:{T+3}], v{T+10} offset:{L_MX}
        s_mov_b32 s47, {hex(f2u(LOG2E/16))}
        s_waitcnt lgkmcnt(0)
        v_max3_f32 v{T}, v{T}, v{T+1}, v{T+2}
        v_max_f32 v{T}, v{T}, v{T+3}
        v_mul_f32 v{T}, s47, v{T}''')
        for i in range(NG): a(f'v_fma_f32 v{S+i}, v{S+i}, s47, -v{T}')
        for i in range(NG): a(f'v_exp_f32 v{S+i}, v{S+i}')
        a(f'v_readlane_b32 s48, v{T}, 0\nv_readlane_b32 s49, v{T}, 8')
        B=K
        order=[10]+list(range(10))
        for i in order:
            a(f'v_cvt_pk_bf16_f32 v{T+1}, v{S+i}, v{S+i}')
            for r in range(4): a(f'v_and_b32 v{B+4*i+r}, v{T+1}, v{MK+r}')
        a(f'''v_add_f32 v{T+2}, v{S}, v{S+1}''')
        for i in range(2,NG): a(f'v_add_f32 v{T+2}, v{T+2}, v{S+i}')
        s.bfly('v_add_f32',T+2,T+3,16); s.bfly('v_add_f32',T+2,T+3,32)
        a(f'''ds_write_b32 v{T+9}, v{T+2} offset:{L_LS}
        s_cmp_eq_u32 s46, 0
        s_cselect_b32 s48, s48, s49''')
        s.stamp(4)
        for n_,i in enumerate(order):
            left=NG-1-n_
            if left==s.win-1 or left<s.win-1: a(f's_waitcnt vmcnt({2*left})')
            c0='0' if n_==0 else f'v[{O}:{O+3}]'; c1='0' if n_==0 else f'v[{O+4}:{O+7}]'
            a(f'v_mfma_f32_16x16x32_bf16 v[{O}:{O+3}], v[{V+8*i}:{V+8*i+3}], v[{B+4*i}:{B+4*i+3}], {c0}')
            a(f'v_mfma_f32_16x16x32_bf16 v[{O+4}:{O+7}], v[{V+8*i+4}:{V+8*i+7}], v[{B+4*i}:{B+4*i+3}], {c1}')
        s.stamp(5)
        a(f'''ds_write_b128 v{T+11}, v[{O}:{O+3}]
        ds_write_b128 v{T+11}, v[{O+4}:{O+7}] offset:1024
        s_waitcnt lgkmcnt(0)
        s_barrier
        ds_read_b128 v[8:11], v{T+14} offset:{L_LS}
        ds_read_b64 v[12:13], v{T+12}
        ds_read_b64 v[14:15], v{T+12} offset:2048
        ds_read_b64 v[16:17], v{T+12} offset:4096
        ds_read_b64 v[18:19], v{T+12} offset:6144
        v_mov_b32 v23, s32''')
        a('s_waitcnt lgkmcnt(0)' if s.debug else 's_waitcnt lgkmcnt(4)')
        a(f'''v_add_f32 v8, v8, v9
        v_add_f32 v10, v10, v11
        v_add_f32 v8, v8, v10
        v_rcp_f32 v9, v8
        v_log_f32 v10, v8
        s_waitcnt lgkmcnt(0)
        v_pk_add_f32 v[12:13], v[12:13], v[14:15]
        v_pk_add_f32 v[16:17], v[16:17], v[18:19]
        v_add_f32 v22, s48, v10
        v_pk_add_f32 v[12:13], v[12:13], v[16:17]
        v_mul_f32 v20, v12, v9
        v_mul_f32 v21, v13, v9''')
        s.store2(f'global_store_dwordx4 v{T+13}, v[20:23], s[30:31]')
        s.stamp(6)
        s.end()
    def rwave(s):
        a=s.a
        MK=4; A=8; DUP=64; B=80; D=88; T=92; s.role='R'
        a(f'''L_R:
        s_waitcnt lgkmcnt(0)
        s_load_dword s32, s[30:31], 0
        s_cmp_eq_u32 s33, 1
        s_cbranch_scc0 L_R_notm
        s_cmp_lt_u32 s35, 21
        s_cbranch_scc0 L_R_notm
        s_mul_i32 s36, s34, 21
        s_add_u32 s36, s36, s35
        s_lshr_b32 s44, s36, 2
        s_and_b32 s45, s36, 3
        v_min_u32 v2, 55, v1
        s_mul_i32 s37, s45, 224
        v_lshl_add_u32 v3, v2, 2, s37
        global_load_dword v{T}, v3, s[22:23]
        s_mul_i32 s37, s45, {112*5376}
        s_lshl_b32 s38, s44, 7
        s_add_u32 s37, s37, s38
        v_lshrrev_b32 v{T+1}, 3, v1
        v_mul_u32_u24 v3, {14*5376}, v{T+1}
        v_and_b32 v{T+2}, 7, v1
        v_lshlrev_b32 v{T+2}, 4, v{T+2}
        v_add3_u32 v3, v3, v{T+2}, s37''')
        for i in range(14):
            a(f'global_load_dwordx4 v[{A+4*i}:{A+4*i+3}], v3, s[24:25] {s.wnt}')
            if i<13: a('v_add_u32 v3, 5376, v3')
        s.masks(MK)
        a(f'''v_mul_u32_u24 v3, 37, v2
        v_lshrrev_b32 v3, 8, v3
        v_mul_u32_u24 v{T+3}, 7, v3
        v_sub_u32 v{T+3}, v2, v{T+3}
        v_lshlrev_b32 v{T+3}, 3, v{T+3}
        v_lshl_add_u32 v3, v3, 6, v{T+3}
        v_lshlrev_b32 v{T+1}, 6, v{T+1}
        v_lshlrev_b32 v{T+8}, 4, v1
        v_lshrrev_b32 v{T+9}, 5, v1
        v_lshl_add_u32 v{T+9}, v{T+9}, 8, v{T+2}
        v_bfe_u32 v{T+10}, v1, 3, 2
        v_lshl_add_u32 v{T+9}, v{T+10}, 2, v{T+9}
        v_add_u32 v{T+9}, {L_MD}, v{T+9}
        s_mul_i32 s37, s45, 21504
        s_lshl_b32 s38, s44, 9
        s_add_u32 s37, s37, s38
        s_add_u32 s37, s37, {WS_H1}
        v_lshl_add_u32 v{T+10}, v1, 3, s37
        s_waitcnt vmcnt(14) lgkmcnt(0)
        s_add_u32 s32, s32, 0x9e3779b9
        v_lshlrev_b32 v{T+4}, 16, v{T}
        v_and_b32 v{T+5}, 0xffff0000, v{T}''')
        s.silu(T+4,T+4,T+6); s.silu(T+5,T+5,T+7)
        a(f'''v_cvt_pk_bf16_f32 v{T+4}, v{T+4}, v{T+4}
        v_cvt_pk_bf16_f32 v{T+5}, v{T+5}, v{T+5}
        ds_write_b64 v3, v[{T+4}:{T+5}] offset:{L_MT}
        ds_read_b128 v[{DUP}:{DUP+3}], v{T+1} offset:{L_MT}
        ds_read_b128 v[{DUP+4}:{DUP+7}], v{T+1} offset:{L_MT+16}
        ds_read_b128 v[{DUP+8}:{DUP+11}], v{T+1} offset:{L_MT+32}
        ds_read_b64 v[{DUP+12}:{DUP+13}], v{T+1} offset:{L_MT+48}
        s_waitcnt vmcnt(0) lgkmcnt(0)''')
        s.stamp(1)
        s.gemv_steps(D,A,DUP,14,MK,B)
        a(f'''ds_write_b128 v{T+8}, v[{D}:{D+3}] offset:{L_MD}
        ds_read2_b32 v[{T+4}:{T+5}], v{T+9} offset0:0 offset1:160
        s_waitcnt lgkmcnt(0)
        v_add_f32 v{T+4}, v{T+4}, v{T+5}
        v_mov_b32 v{T+5}, s32
        global_store_dwordx2 v{T+10}, v[{T+4}:{T+5}], s[30:31] sc1''')
        s.stamp(2)
        a('s_branch L_R_x0\nL_R_notm:')
        a('s_waitcnt lgkmcnt(0)\ns_add_u32 s32, s32, 0x9e3779b9')
        if s.prefetch:
            a(f'''s_cmp_eq_u32 s33, 2
            s_cbranch_scc0 L_R_nopf
            s_getpc_b64 s[36:37]
            L_pc:
            s_sub_u32 s36, s36, L_pc-{NAME}_kernel
            s_subb_u32 s37, s37, 0
            s_and_b32 s38, s35, 3
            s_lshl_b32 s38, s38, 12
            v_lshl_add_u32 v2, v1, 6, s38
            v_min_u32 v2, L_exit-{NAME}_kernel, v2
            global_load_dword v250, v2, s[36:37]
            L_R_nopf:''')
        a(f'''s_cmp_eq_u32 s33, 0
        s_cbranch_scc0 L_R_x0
        s_getreg_b32 s44, hwreg(HW_REG_XCC_ID, 0, 4)
        s_lshl_b32 s36, s34, 8
        s_lshl_b32 s37, s35, 3
        s_add_u32 s37, s37, s36
        s_add_u32 s37, s37, {WS_XT}
        v_mov_b32 v2, s37
        v_mov_b32 v4, s44
        v_mov_b32 v5, s32
        s_mov_b64 exec, 1
        global_store_dwordx2 v2, v[4:5], s[30:31] sc1
        s_mov_b64 exec, -1
        s_add_u32 s36, s36, {WS_XT}
        v_min_u32 v2, 23, v1
        v_lshl_add_u32 v2, v2, 3, s36
        s_lshl_b32 s36, s34, 11
        s_add_u32 s36, s36, {WS_H2}
        v_lshl_add_u32 v3, v1, 4, s36
        v_lshlrev_b32 v6, 3, v1
        s_barrier''')
        s.stamp(3)
        s.poll('''global_load_dwordx4 v[8:11], v3, s[30:31] sc1
        global_load_dwordx4 v[12:15], v3, s[30:31] offset:1024 sc1
        global_load_dwordx2 v[16:17], v2, s[30:31] sc1''',[9,11,13,15,17],20,s.sleepq)
        a(f'''v_cmp_ne_u32 vcc, s44, v16
        v_mov_b32 v9, v10
        v_mov_b32 v13, v14
        s_cmp_eq_u64 vcc, 0
        s_cselect_b32 s43, 1, 0
        ds_write_b64 v6, v[8:9] offset:{L_Q}
        ds_write_b64 v6, v[12:13] offset:{L_Q+512}
        v_mov_b32 v7, s43
        v_mov_b32 v8, 0
        ds_write_b32 v8, v7 offset:{L_FLAG}
        s_waitcnt lgkmcnt(0)''')
        s.stamp(4)
        if s.debug: a('s_mov_b32 s90, s42\ns_mov_b32 s92, s43')
        a('''s_branch L_R_x
        L_R_x0:
        s_cmp_ge_u32 s35, 16
        s_cbranch_scc1 L_R_end
        s_barrier
        L_R_x:
        s_barrier
        s_cmp_ge_u32 s35, 16
        s_cbranch_scc1 L_R_end''')
        A=8; G3=40; T=64; B=80; D=88
        a(f'''; ---------------- output projection: 32 rows x 112 columns of wo per wave ----------------
        s_lshl_b32 s36, s34, 9
        s_lshl_b32 s37, s35, 5
        s_add_u32 s36, s36, s37
        s_mul_i32 s36, s36, 896
        s_mul_i32 s37, s33, 224
        s_add_u32 s36, s36, s37
        v_lshrrev_b32 v2, 4, v1
        v_and_b32 v3, 15, v1
        v_min_u32 v3, 13, v3
        v_mul_u32_u24 v{T}, 1792, v2
        v_lshl_add_u32 v3, v3, 4, s36
        v_add_u32 v3, v3, v{T}''')
        for k in range(4):
            a(f'global_load_dwordx4 v[{A+4*k}:{A+4*k+3}], v3, s[12:13] {s.wnt}')
            a(f'global_load_dwordx4 v[{A+16+4*k}:{A+16+4*k+3}], v3, s[12:13] offset:896 {s.wnt}')
            if k<3: a('v_add_u32 v3, 7168, v3')
        a(f'v_mov_b32 v{T}, 0\nds_read_b32 v{T+1}, v{T} offset:{L_FLAG}')
        s.masks(MK)
        a(f'''s_lshl_b32 s36, s34, 4
        s_add_u32 s36, s36, s35
        s_mul_i32 s36, s36, 6144
        s_add_u32 s36, s36, {WS_H3+2048}
        v_bfe_u32 v3, v1, 2, 2
        v_lshlrev_b32 v3, 8, v3
        v_lshl_add_u32 v3, v2, 6, v3
        v_and_b32 v2, 3, v1
        v_lshl_add_u32 v3, v2, 4, v3
        v_add_u32 v3, s36, v3
        s_mul_i32 s36, s34, 57344
        s_add_u32 s44, s36, {WS_H35}
        s_mul_i32 s37, s33, {7*2048}
        s_lshl_b32 s38, s35, 7
        s_add_u32 s36, s44, s37
        s_add_u32 s36, s36, s38
        v_lshrrev_b32 v2, 3, v1
        v_lshlrev_b32 v2, 11, v2
        v_and_b32 v{T+2}, 7, v1
        v_lshl_add_u32 v2, v{T+2}, 4, v2
        v_add_u32 v2, s36, v2
        s_lshl_b32 s36, s35, 1
        s_add_u32 s45, s36, s33
        s_lshl_b32 s36, s45, 11
        s_add_u32 s36, s36, s44
        v_lshl_add_u32 v100, v1, 4, s36
        s_mul_i32 s36, s34, 3584
        s_lshl_b32 s37, s45, 7
        s_add_u32 s36, s36, s37
        s_add_u32 s36, s36, {WS_H4}
        v_lshl_add_u32 v101, v1, 4, s36
        s_mov_b32 s46, 0xff00ff00
        s_mov_b32 s47, 0xff00ff00
        s_waitcnt lgkmcnt(0)
        v_readfirstlane_b32 s43, v{T+1}
        s_barrier
        s_barrier''')
        s.stamp(5)
        s.poll('\n'.join(f'global_load_dwordx4 v[{G3+4*k}:{G3+4*k+3}], v3, s[30:31] offset:{1024*k-2048} sc1' for k in range(6)),[G3+4*k+3 for k in range(6)],T,s.sleep3)
        s.stamp(6)
        if s.debug: a('s_mov_b32 s88, s42')
        L=lambda k:G3+4*k+2
        a(f'''v_max3_f32 v{T}, v{L(0)}, v{L(1)}, v{L(2)}
        v_max3_f32 v{T+1}, v{L(3)}, v{L(4)}, v{L(5)}
        v_max_f32 v{T}, v{T}, v{T+1}
        v_max_f32_dpp v{T}, v{T}, v{T} row_ror:4 {DPPF}
        v_max_f32_dpp v{T}, v{T}, v{T} row_ror:8 {DPPF}''')
        for k in range(6): a(f'v_sub_f32 v{L(k)}, v{L(k)}, v{T}')
        for k in range(6): a(f'v_exp_f32 v{L(k)}, v{L(k)}')
        a(f'v_mul_f32 v{T+2}, v{G3}, v{L(0)}\nv_mul_f32 v{T+3}, v{G3+1}, v{L(0)}\nv_add_f32 v{T+1}, v{L(0)}, v{L(1)}')
        for k in range(1,6):
            a(f'v_fmac_f32 v{T+2}, v{G3+4*k}, v{L(k)}\nv_fmac_f32 v{T+3}, v{G3+4*k+1}, v{L(k)}')
            if k<5: a(f'v_add_f32 v{T+1}, v{T+1}, v{L(k+1)}')
        for k in (4,8):
            for r in (1,2,3): a(f'v_add_f32_dpp v{T+r}, v{T+r}, v{T+r} row_ror:{k} {DPPF}')
        a(f'''v_rcp_f32 v{T+1}, v{T+1}
        v_mul_f32 v{T+2}, v{T+2}, v{T+1}
        v_mul_f32 v{T+3}, v{T+3}, v{T+1}
        v_cvt_pk_bf16_f32 v{T+2}, v{T+2}, v{T+2}
        v_cvt_pk_bf16_f32 v{T+3}, v{T+3}, v{T+3}''')
        s.gemv_steps(D,A,None,8,MK,B,dpp=lambda k:(T+2+(k&1),k>>1))
        a(f'''v_mov_b32 v{T+6}, s32
        v_mov_b32 v{T+7}, s32
        v_cndmask_b32 v{T+4}, v{D}, v{D+2}, s[46:47]
        v_cndmask_b32 v{T+5}, v{D+1}, v{D+3}, s[46:47]
        s_mov_b32 exec_hi, 0x00ffffff''')
        s.store2(f'global_store_dwordx4 v2, v[{T+4}:{T+7}], s[30:31]')
        a('s_mov_b32 exec_hi, -1')
        s.stamp(7)
        a('''s_cmp_ge_u32 s33, 2
        s_cbranch_scc1 L_R_end
        s_cmp_ge_u32 s35, 14
        s_cbranch_scc1 L_R_end''')
        s.poll('global_load_dwordx4 v[8:11], v100, s[30:31] sc1\nglobal_load_dwordx4 v[12:15], v100, s[30:31] offset:1024 sc1',[10,14],16,s.sleep3)
        s.stamp(8)
        if s.debug: a('s_mov_b32 s86, s42')
        a(f'''v_pk_add_f32 v[8:9], v[8:9], v[12:13]
        v_add_f32_dpp v8, v8, v8 row_ror:8 {DPPF}
        v_add_f32_dpp v9, v9, v9 row_ror:8 {DPPF}
        v_mov_b32 v12, v8
        v_mov_b32 v13, v9
        v_permlane16_swap_b32 v12, v8
        v_permlane16_swap_b32 v13, v9
        v_pk_add_f32 v[8:9], v[8:9], v[12:13]
        v_mov_b32 v12, v8
        v_mov_b32 v13, v9
        v_permlane32_swap_b32 v12, v8
        v_permlane32_swap_b32 v13, v9
        v_pk_add_f32 v[8:9], v[8:9], v[12:13]
        s_mov_b64 exec, 0xff
        global_store_dwordx4 v101, v[8:11], s[30:31] sc1''')
        s.stamp(9)
        a('L_R_end:')
        s.end()
    def aux(s):
        a=s.a
        s.role='X'; MK=4; A=8; A2=40; GT=72; DUP=104; B=112; D=120; T=124
        XC=140; LN=141; GA=142; SB=143; CB=144; TBW=145; TBR=146; DDW=147; DDR=148
        a(f'''L_aux:
        s_sub_u32 s44, s35, 24
        s_mul_i32 s45, s34, 7
        s_add_u32 s45, s45, s44
        v_lshrrev_b32 v2, 3, v1
        v_and_b32 v3, 7, v1
        v_lshlrev_b32 v3, 4, v3
        v_mov_b32 v162, {WS_H5}
        s_waitcnt lgkmcnt(0)
        s_load_dword s32, s[30:31], 0
        s_cmp_eq_u32 s33, 7
        s_cbranch_scc1 L_aux7
        s_lshl_b32 s46, s33, 6
        v_add_u32 v{T}, s46, v1
        v_lshlrev_b32 v{T+1}, 1, v{T}
        global_load_ushort v{XC}, v{T+1}, s[4:5]
        v_min_u32 v{T+1}, 55, v1
        v_lshlrev_b32 v{T+1}, 4, v{T+1}
        global_load_dwordx4 v[{GT}:{GT+3}], v{T+1}, s[4:5]
        s_lshl_b32 s36, s33, 19
        s_lshl_b32 s37, s34, 10
        s_add_u32 s36, s36, s37
        s_lshl_b32 s37, s44, 7
        s_add_u32 s36, s36, s37
        v_lshl_add_u32 v{T+1}, v2, 16, v3
        v_add_u32 v{T+1}, s36, v{T+1}''')
        for i in range(8):
            a(f'global_load_dwordx4 v[{A+4*i}:{A+4*i+3}], v{T+1}, s[10:11] {s.wnt}')
            if i<7: a(f'v_add_u32 v{T+1}, 8192, v{T+1}')
        s.masks(MK)
        a(f'''v_lshlrev_b32 v150, 3, v{T}
        v_add_u32 v150, {WS_H1}, v150
        v_add_u32 v151, 21504, v150
        v_add_u32 v152, 21504, v151
        v_add_u32 v153, 21504, v152
        s_lshl_b32 s36, s33, 8
        v_lshl_add_u32 v{TBW}, v1, 2, s36
        v_lshl_add_u32 v{TBR}, v2, 5, s36
        s_lshl_b32 s36, s33, 10
        v_lshl_add_u32 v{DDW}, v1, 4, s36
        v_lshlrev_b32 v149, 2, v{T}
        s_waitcnt vmcnt(8) lgkmcnt(0)
        s_add_u32 s32, s32, 0x9e3779b9
        v_lshlrev_b32 v{XC}, 16, v{XC}''')
        X=GT+4
        for r in range(4):
            a(f'v_lshlrev_b32 v{X+2*r}, 16, v{GT+r}\nv_and_b32 v{X+2*r+1}, 0xffff0000, v{GT+r}')
        a(f'v_cmp_gt_u32 s[48:49], 56, v1\nv_add_f32 v{T}, v{X}, v{X+1}')
        for r in range(2,8): a(f'v_add_f32 v{T}, v{T}, v{X+r}')
        a(f'v_cndmask_b32 v{T}, 0, v{T}, s[48:49]')
        s.wavesum(T,T+1)
        a(f'v_mul_f32 v{T}, {hex(f2u(1/448))}, v{T}')
        for r in range(8): a(f'v_sub_f32 v{X+r}, v{X+r}, v{T}')
        a(f'v_mul_f32 v{T+2}, v{X}, v{X}')
        for r in range(1,8): a(f'v_fmac_f32 v{T+2}, v{X+r}, v{X+r}')
        a(f'v_cndmask_b32 v{T+2}, 0, v{T+2}, s[48:49]')
        s.wavesum(T+2,T+1)
        a(f'v_mul_f32 v{T+2}, {hex(f2u(1/448))}, v{T+2}')
        s.lnfin(LN,XC,T,T+2,T+3)
        s.stamp(1)
        ld='\n'.join(f'global_load_dwordx2 v[{GT+4*q+2*sec}:{GT+4*q+2*sec+1}], v{150+q}, s[30:31] offset:{3584*sec} sc1' for q in range(4) for sec in range(2))
        s.poll(ld,[GT+2*i+1 for i in range(8)],T)
        s.stamp(2)
        if s.debug: a('s_mov_b32 s90, s42')
        a(f'''v_add_f32 v{T}, v{GT}, v{GT+4}
        v_add_f32 v{T+1}, v{GT+2}, v{GT+6}
        v_add_f32 v{T+2}, v{GT+8}, v{GT+12}
        v_add_f32 v{T+3}, v{GT+10}, v{GT+14}
        v_add_f32 v{T}, v{T}, v{T+2}
        v_add_f32 v{T+1}, v{T+1}, v{T+3}
        v_cvt_pk_bf16_f32 v{T}, v{T}, v{T+1}
        v_and_b32 v{T+1}, 0xffff0000, v{T}
        v_lshlrev_b32 v{T}, 16, v{T}
        v_add_f32 v{T+1}, 1.0, v{T+1}''')
        s.rnd(f'v{T+1}',f'v{T+1}')
        s.modulate_gemv(LN,T+1,T,T+2,TBW,TBR,DDW,DUP,A,MK,B,D)
        s.stamp(3)
        a(f'''s_cmp_eq_u32 s44, 7
        s_cbranch_scc1 L_aux_end''')
        for q in range(4): a(f'v_add_u32 v{150+q}, {3*3584}, v{150+q}\nv_add_u32 v{154+q}, {2*3584}, v{150+q}')
        ld='\n'.join(f'global_load_dwordx2 v[{GT+8*q+2*sec}:{GT+8*q+2*sec+1}], v{150+q}, s[30:31] offset:{3584*(sec-1)} sc1' for q in range(4) for sec in range(3))
        ld+='\n'+'\n'.join(f'global_load_dwordx2 v[{GT+8*q+6}:{GT+8*q+7}], v{154+q}, s[30:31] sc1' for q in range(4))
        s.poll(ld,[GT+2*i+1 for i in range(16)],T)
        s.stamp(4)
        a(f'''v_bfe_u32 v{T}, v1, 2, 1
        v_cmp_eq_u32 vcc, 1, v{T}
        v_mov_b32 v{T+2}, s16
        v_mov_b32 v{T+3}, s17
        v_mov_b32 v{T+4}, s18
        v_mov_b32 v{T+5}, s19
        v_cndmask_b32 v{T+2}, v{T+2}, v{T+4}, vcc
        v_cndmask_b32 v{T+3}, v{T+3}, v{T+5}, vcc
        s_mul_i32 s36, s33, {64*3584}
        s_lshl_b32 s37, s45, 6
        s_add_u32 s36, s36, s37
        s_add_u32 s36, s36, 3584
        v_mul_u32_u24 v{T+4}, {8*3584}, v2
        v_and_b32 v{T+5}, 3, v1
        v_lshlrev_b32 v{T+5}, 4, v{T+5}
        v_add3_u32 v{T+4}, v{T+4}, v{T+5}, s36
        v_mov_b32 v{T+5}, 0
        v_lshl_add_u64 v[{T+2}:{T+3}], v[{T+4}:{T+5}], 0, v[{T+2}:{T+3}]
        s_mov_b64 s[36:37], {3*3584}''')
        for i in range(8):
            a(f'global_load_dwordx4 v[{A+4*i}:{A+4*i+3}], v[{T+2}:{T+3}], off offset:{3584*(i%3-1)} {s.wnt}')
            if i%3==2: a(f'v_lshl_add_u64 v[{T+2}:{T+3}], v[{T+2}:{T+3}], 0, s[36:37]')
        for k,dst in enumerate((GA,SB,CB,T+6)):
            a(f'''v_add_f32 v{T}, v{GT+2*k}, v{GT+8+2*k}
            v_add_f32 v{T+1}, v{GT+16+2*k}, v{GT+24+2*k}
            v_add_f32 v{T}, v{T}, v{T+1}''')
            s.rnd(f'v{dst}',f'v{T}')
        a(f'v_add_f32 v{CB}, 1.0, v{CB}'); s.rnd(f'v{CB}',f'v{CB}')
        a(f'''ds_write_b32 v149, v{T+6} offset:{L_GB}
        s_cmp_lt_u32 s33, 4
        s_cbranch_scc1 L_aux_h4''')
        s.down_loads(A2,T)
        a(f'''L_aux_h4:
        s_lshl_b32 s36, s33, 9
        s_add_u32 s36, s36, {WS_H4+3584}
        v_lshrrev_b32 v{T}, 4, v1
        v_lshl_add_u32 v150, v{T}, 7, v3
        v_add_u32 v150, s36, v150
        v_add_u32 v151, {3*3584}, v150
        v_add_u32 v152, {3*3584}, v151
        v_lshrrev_b32 v{T}, 5, v1
        s_lshl_b32 s36, s33, 2
        v_lshl_add_u32 v153, v{T}, 5, s36
        v_mov_b32 v154, 0
        s_mov_b32 s46, 0xff00ff00
        s_mov_b32 s47, 0xff00ff00''')
        s.stamp(5)
        ld='\n'.join(f'global_load_dwordx4 v[{GT+4*i}:{GT+4*i+3}], v{150+i//3}, s[30:31] offset:{3584*(i%3-1)} sc1' for i in range(8))
        s.poll(ld,[GT+4*i+2 for i in range(8)],T,s.sleep4)
        s.stamp(6)
        if s.debug: a('s_mov_b32 s88, s42')
        P=lambda i:f'v[{GT+4*i}:{GT+4*i+1}]'
        for (x,y) in ((0,1),(2,3),(4,5),(6,7),(0,2),(4,6),(0,4)): a(f'v_pk_add_f32 {P(x)}, {P(x)}, {P(y)}')
        a(f'v_cndmask_b32 v{T}, v{GT}, v{GT+1}, s[46:47]')
        s.rnd(f'v{T}',f'v{T}')
        a(f'v_mul_f32 v{T}, v{GA}, v{T}'); s.rnd(f'v{T}',f'v{T}')
        a(f'v_add_f32 v{T}, v{XC}, v{T}'); s.rnd(f'v{XC}',f'v{T}')
        a(f'v_mul_f32 v{T+1}, v{XC}, v{XC}\nv_add_f32_dpp v{T}, v{XC}, v{XC} row_ror:1 {DPPF}\nv_add_f32_dpp v{T+1}, v{T+1}, v{T+1} row_ror:1 {DPPF}\nds_write_b32 v149, v{XC} offset:{L_X1}')
        for k in (2,4,8): a(f'v_add_f32_dpp v{T}, v{T}, v{T} row_ror:{k} {DPPF}\nv_add_f32_dpp v{T+1}, v{T+1}, v{T+1} row_ror:{k} {DPPF}')
        a(f'v_permlane32_swap_b32 v{T}, v{T+1}\nv_add_f32 v{T}, v{T}, v{T+1}')
        s.bfly('v_add_f32',T,T+1,16)
        a(f'''ds_write_b32 v153, v{T} offset:{L_ST}
        s_waitcnt lgkmcnt(0)
        s_barrier
        ds_read_b128 v[{GT}:{GT+3}], v154 offset:{L_ST}
        ds_read_b128 v[{GT+8}:{GT+11}], v154 offset:{L_ST+32}
        ds_read_b128 v[{GT+4}:{GT+7}], v154 offset:{L_ST+16}
        ds_read_b128 v[{GT+12}:{GT+15}], v154 offset:{L_ST+48}
        s_waitcnt lgkmcnt(0)
        v_pk_add_f32 v[{GT}:{GT+1}], v[{GT}:{GT+1}], v[{GT+2}:{GT+3}]
        v_pk_add_f32 v[{GT+8}:{GT+9}], v[{GT+8}:{GT+9}], v[{GT+10}:{GT+11}]
        v_pk_add_f32 v[{GT}:{GT+1}], v[{GT}:{GT+1}], v[{GT+4}:{GT+5}]
        v_pk_add_f32 v[{GT+8}:{GT+9}], v[{GT+8}:{GT+9}], v[{GT+12}:{GT+13}]
        v_add_f32 v{GT}, v{GT}, v{GT+1}
        v_add_f32 v{GT+8}, v{GT+8}, v{GT+9}
        v_add_f32 v{T}, v{GT}, v{GT+6}
        v_add_f32 v{T+2}, v{GT+8}, v{GT+14}
        v_mul_f32 v{T}, {hex(f2u(1/448))}, v{T}
        v_mul_f32 v{T+2}, {hex(f2u(1/448))}, v{T+2}
        v_fma_f32 v{T+2}, -v{T}, v{T}, v{T+2}
        v_max_f32 v{T+2}, 0, v{T+2}''')
        s.lnfin(LN,XC,T,T+2,T+3)
        s.stamp(7)
        s.modulate_gemv(LN,CB,SB,T+2,TBW,TBR,DDW,DUP,A,MK,B,D)
        s.stamp(8)
        a(f'''s_cmp_ge_u32 s33, 4
        s_cbranch_scc1 L_aux_down
        s_cmp_lg_u32 s33, 0
        s_cbranch_scc1 L_aux_end
        s_bitcmp1_b32 s45, 0
        s_cbranch_scc1 L_aux_end
        s_lshr_b32 s46, s45, 1
        s_lshl_b32 s36, s46, 6
        v_lshrrev_b32 v{T}, 2, v3
        v_add_u32 v{T}, s36, v{T}
        v_add_u32 v{T+1}, {L_GB}, v{T}
        v_add_u32 v{T}, {L_X1}, v{T}
        ds_read2_b32 v[{T+2}:{T+3}], v{T} offset0:0 offset1:8
        ds_read2_b32 v[{T+4}:{T+5}], v{T+1} offset0:0 offset1:8
        s_mul_i32 s36, s46, 7168
        s_add_u32 s36, s36, {WS_H5+3072}
        v_lshl_add_u32 v150, v1, 4, s36
        s_lshl_b32 s36, s46, 5
        v_lshrrev_b32 v151, 3, v3
        v_add_u32 v151, s36, v151
        s_waitcnt lgkmcnt(0)''')
        ld='\n'.join(f'global_load_dwordx4 v[{GT+4*i}:{GT+4*i+3}], v150, s[30:31] offset:{1024*(i-3)} sc1' for i in range(7))
        s.poll(ld,[GT+4*i+2 for i in range(7)],T+6,s.sleep5)
        s.stamp(9)
        if s.debug: a('s_mov_b32 s86, s42')
        for (x,y) in ((0,1),(2,3),(4,5),(0,2),(4,6),(0,4)): a(f'v_pk_add_f32 {P(x)}, {P(x)}, {P(y)}')
        a(f'''v_add_f32_dpp v{GT}, v{GT}, v{GT} row_ror:8 {DPPF}
        v_add_f32_dpp v{GT+1}, v{GT+1}, v{GT+1} row_ror:8 {DPPF}
        v_mov_b32 v{GT+2}, v{GT}
        v_mov_b32 v{GT+3}, v{GT+1}
        v_permlane16_swap_b32 v{GT+2}, v{GT}
        v_permlane16_swap_b32 v{GT+3}, v{GT+1}
        v_pk_add_f32 v[{GT}:{GT+1}], v[{GT}:{GT+1}], v[{GT+2}:{GT+3}]
        v_mov_b32 v{GT+2}, v{GT}
        v_mov_b32 v{GT+3}, v{GT+1}
        v_permlane32_swap_b32 v{GT+2}, v{GT}
        v_permlane32_swap_b32 v{GT+3}, v{GT+1}
        v_pk_add_f32 v[{GT}:{GT+1}], v[{GT}:{GT+1}], v[{GT+2}:{GT+3}]
        v_cvt_pk_bf16_f32 v{GT}, v{GT}, v{GT+1}
        v_and_b32 v{GT+1}, 0xffff0000, v{GT}
        v_lshlrev_b32 v{GT}, 16, v{GT}
        v_pk_mul_f32 v[{GT}:{GT+1}], v[{GT}:{GT+1}], v[{T+4}:{T+5}]
        v_cvt_pk_bf16_f32 v{GT}, v{GT}, v{GT+1}
        v_and_b32 v{GT+1}, 0xffff0000, v{GT}
        v_lshlrev_b32 v{GT}, 16, v{GT}
        v_pk_add_f32 v[{GT}:{GT+1}], v[{GT}:{GT+1}], v[{T+2}:{T+3}]
        v_cvt_pk_bf16_f32 v{GT}, v{GT}, v{GT+1}
        s_mov_b64 exec, 0xff
        global_store_short v151, v{GT}, s[26:27]
        global_store_short_d16_hi v151, v{GT}, s[26:27] offset:16
        s_cmp_lg_u32 s46, 0
        s_cbranch_scc1 L_aux_end
        s_mov_b64 exec, 1
        v_mov_b32 v{T}, 0
        v_mov_b32 v{T+1}, s32
        global_store_dword v{T}, v{T+1}, s[30:31] sc1''')
        if s.probe:
            a(f'''s_mov_b32 s42, 0
            L_probe:
            s_memrealtime s[60:61]
            s_add_u32 s42, s42, 1
            s_waitcnt lgkmcnt(0)
            s_sub_u32 s60, s60, s62
            s_cmp_ge_u32 s60, {s.probe}
            s_cbranch_scc1 L_aux_end
            s_cmp_lt_u32 s42, 100000
            s_cbranch_scc1 L_probe''')
        a('s_branch L_aux_end')
        a(f'''L_aux7:''')
        s.masks(MK)
        s.ddr_addr(DDR,T)
        a(f'''s_lshl_b32 s36, s34, 11
        s_lshl_b32 s37, s44, 8
        s_add_u32 s36, s36, s37
        s_add_u32 s36, s36, {WS_H2}
        v_lshl_add_u32 v150, v1, 2, s36
        s_waitcnt lgkmcnt(0)
        s_add_u32 s32, s32, 0x9e3779b9
        s_barrier''')
        s.dd_sum(GT,DDR)
        a(f'''v_mov_b32_dpp v{GT+1}, v{GT} quad_perm:[1,1,3,3] {DPPF}
        v_cvt_pk_bf16_f32 v{GT}, v{GT}, v{GT+1}
        v_mov_b32 v{GT+1}, s32
        s_mov_b32 exec_lo, 0x55555555
        s_mov_b32 exec_hi, 0x55555555
        global_store_dwordx2 v150, v[{GT}:{GT+1}], s[30:31] sc1
        s_mov_b64 exec, -1''')
        s.stamp(3)
        a('''s_cmp_eq_u32 s44, 7
        s_cbranch_scc1 L_aux_end''')
        s.down_loads(A2,T)
        a('''s_mov_b32 s46, 0xff00ff00
        s_mov_b32 s47, 0xff00ff00
        s_barrier
        s_barrier
        L_aux_down:''')
        s.dd_sum(GT,DDR)
        s.rnd(f'v{GT}',f'v{GT}')
        a(f'v_mov_b32 v{GT+1}, v{GT}\nv_permlane32_swap_b32 v{GT}, v{GT+1}')
        s.silu(GT,GT,GT+2); s.rnd(f'v{GT}',f'v{GT}')
        a(f'''v_mul_f32 v{GT}, v{GT}, v{GT+1}
        v_cvt_pk_bf16_f32 v{GT}, v{GT}, v{GT}
        ds_write_b32 v160, v{GT}
        ds_read_b128 v[{DUP}:{DUP+3}], v161
        ds_read_b128 v[{DUP+4}:{DUP+7}], v161 offset:16
        s_waitcnt vmcnt(0) lgkmcnt(0)''')
        s.stamp(10)
        s.gemv_steps(D,A2,DUP,8,MK,B)
        a(f'''v_mov_b32 v{T+6}, s32
        v_mov_b32 v{T+7}, s32
        v_cndmask_b32 v{T+4}, v{D}, v{D+2}, s[46:47]
        v_cndmask_b32 v{T+5}, v{D+1}, v{D+3}, s[46:47]
        s_mov_b32 exec_hi, 0x00ffffff
        global_store_dwordx4 v162, v[{T+4}:{T+7}], s[30:31] sc1''')
        s.stamp(11)
        a('L_aux_end:')
        s.end()
    def ddr_addr(s,DDR,T):
        s.a(f'''v_lshrrev_b32 v{DDR}, 5, v1
        v_lshl_add_u32 v{DDR}, v{DDR}, 8, v3
        v_bfe_u32 v{T}, v1, 3, 2
        v_lshl_add_u32 v{DDR}, v{T}, 2, v{DDR}
        v_add_u32 v{DDR}, {L_DD}, v{DDR}''')
        for w in range(1,7): s.a(f'v_add_u32 v{164+w}, {1024*w}, v{DDR}')
    def dd_sum(s,GT,DDR):
        a=s.a
        for w in range(7): a(f'ds_read2_b32 v[{GT+2*w}:{GT+2*w+1}], v{DDR if w==0 else 164+w} offset0:0 offset1:160')
        a('s_waitcnt lgkmcnt(0)')
        P=lambda i:f'v[{GT+2*i}:{GT+2*i+1}]'
        for (x,y) in ((0,1),(2,3),(4,5),(0,2),(4,6),(0,4)): a(f'v_pk_add_f32 {P(x)}, {P(x)}, {P(y)}')
        a(f'v_add_f32 v{GT}, v{GT}, v{GT+1}')
    def down_loads(s,A2,T):
        a=s.a
        a(f'''s_sub_u32 s38, s33, 4
        s_mul_i32 s36, s45, {32*896}
        s_mul_i32 s37, s38, 224
        s_add_u32 s36, s36, s37
        s_add_u32 s36, s36, {3*896}
        v_lshrrev_b32 v{T}, 4, v1
        v_mul_u32_u24 v{T+1}, {8*896}, v{T}
        v_and_b32 v{T+2}, 15, v1
        v_min_u32 v{T+2}, 13, v{T+2}
        v_lshlrev_b32 v{T+2}, 4, v{T+2}
        v_add3_u32 v{T+1}, v{T+1}, v{T+2}, s36''')
        for t in range(8): a(f'global_load_dwordx4 v[{A2+4*t}:{A2+4*t+3}], v{T+1}, s[20:21] offset:{896*(t-3)} {s.wnt}')
        a(f'''s_lshl_b32 s36, s38, 7
        s_add_u32 s36, s36, {L_ACT}
        v_and_b32 v{T+2}, 31, v1
        v_lshl_add_u32 v160, v{T+2}, 2, s36
        v_lshl_add_u32 v161, v{T}, 5, s36
        s_mul_i32 s36, s38, {7*7168}
        s_lshl_b32 s37, s45, 7
        s_add_u32 s36, s36, s37
        s_add_u32 s36, s36, {WS_H5}
        v_mul_u32_u24 v162, 7168, v2
        v_add3_u32 v162, v162, v3, s36''')
        s.ddr_addr(148,T)
    def lnfin(s,LN,X,MU,VAR,t):
        a=s.a
        a(f'''v_cvt_pk_bf16_f32 v{MU}, v{MU}, v{VAR}
        v_and_b32 v{VAR}, 0xffff0000, v{MU}
        v_lshlrev_b32 v{MU}, 16, v{MU}
        v_add_f32 v{VAR}, {hex(f2u(1e-5))}, v{VAR}
        v_sub_f32 v{MU}, v{X}, v{MU}
        v_cvt_pk_bf16_f32 v{MU}, v{MU}, v{VAR}
        v_and_b32 v{VAR}, 0xffff0000, v{MU}
        v_sqrt_f32 v{VAR}, v{VAR}
        v_lshlrev_b32 v{MU}, 16, v{MU}''')
        s.rnd(f'v{VAR}',f'v{VAR}')
        a(f'v_rcp_f32 v{VAR}, v{VAR}\nv_mul_f32 v{LN}, v{MU}, v{VAR}')
        s.rnd(f'v{LN}',f'v{LN}')
    def modulate_gemv(s,LN,SC,SH,t,TBW,TBR,DDW,DUP,A,MK,B,D):
        a=s.a
        a(f'v_mul_f32 v{t}, v{LN}, v{SC}'); s.rnd(f'v{t}',f'v{t}')
        a(f'''v_add_f32 v{t}, v{t}, v{SH}
        v_cvt_pk_bf16_f32 v{t}, v{t}, v{t}
        ds_write_b32 v{TBW}, v{t} offset:{L_TB}
        ds_read_b128 v[{DUP}:{DUP+3}], v{TBR} offset:{L_TB}
        ds_read_b128 v[{DUP+4}:{DUP+7}], v{TBR} offset:{L_TB+16}
        s_waitcnt lgkmcnt(0)''')
        s.gemv_steps(D,A,DUP,8,MK,B)
        a(f'''ds_write_b128 v{DDW}, v[{D}:{D+3}] offset:{L_DD}
        s_waitcnt lgkmcnt(0)
        s_barrier''')
    def build(s):
        s.prologue(); s.awave(); s.rwave(); s.aux()
        s.a('L_exit:\ns_endpgm')
        body=pad(s.a.text())
        hdr=open('cdna_kernels/'+NAME+'.s.ref').read().split('; Override launch')[0]
        return f'''{hdr}; One persistent launch, one 8-wave workgroup per CU. Generated by my own script (work/gen.py).
; @launch grid=(256,1,1) block=(512,1,1) lds=16384
.amdgcn_target "amdgcn-amd-amdhsa--gfx950"
.text
.globl {NAME}_kernel
.p2align 8
.type {NAME}_kernel,@function
{NAME}_kernel:
{body}
.section .rodata,"a"
.p2align 6
.amdhsa_kernel {NAME}_kernel
  .amdhsa_next_free_vgpr 256
  .amdhsa_next_free_sgpr 102
  .amdhsa_accum_offset 256
  .amdhsa_group_segment_fixed_size 0
  .amdhsa_kernarg_size 112
  .amdhsa_user_sgpr_count 2
  .amdhsa_user_sgpr_kernarg_segment_ptr 1
  .amdhsa_system_sgpr_workgroup_id_x 1
  .amdhsa_float_denorm_mode_32 3
.end_amdhsa_kernel
'''
if __name__=='__main__':
    out=sys.argv[1]
    kw={}
    for x in sys.argv[2:]:
        k,v=x.split('=')
        kw[k]=int(v) if v.lstrip('-').isdigit() else v
    open(out,'w').write(G(**kw).build())
```

```python
import sys
from asmgen import Asm, NAME
from hazard import pad
import gen
from gen import G, f2u, LOG2E, DPPF, STAMP_OFF
WS_XT =0x400
WS_H2 =0x1000
WS_LSE=0x6000
WS_H1A=0x8000
WS_H1B=0xC000
WS_H4 =0xE000
WS_H5 =0x12000
WS_H35=0x2C000
WS_H3 =0x64000
NA=20; NW=7*NA; GS=NW*2048
L_Q=0; L_M=1024; L_L=1088; L_S=1152; L_FLAG=1216; L_P=2048
L_TB=0; L_TB2=1792; L_OT=3584; L_DD=4096; L_ST=7680; L_X1=7808; L_GB=9600; L_FL=11392
TAGC=0x9e3779b9
DUAL=0x100000
JF=4; JQ=12
class G2(G):
    def __init__(s, kq=3, fwin=0, every=32, noA=0, adelay=0, win0=0, mbfirst=0, ddefer=0, **kw):
        super().__init__(**kw); s.kq=kq; s.fwin=fwin; s.every=every; s.noA=noA; s.adelay=adelay; s.win0=win0; s.mbfirst=mbfirst; s.ddefer=ddefer
    def tagsetup(s,bytes_=False):
        s.a(f's_add_u32 s32, s32, {hex(TAGC)}\ns_add_u32 s14, s30, {DUAL}\ns_addc_u32 s15, s31, 0')
        if bytes_: s.a('s_bfe_u32 s50, s32, 0x80008\ns_bfe_u32 s51, s32, 0x80010\ns_lshr_b32 s52, s32, 24\ns_movk_i32 s53, 0xff\ns_and_b32 s48, s32, s53')
    def store2(s,ins):
        if s.local: s.a(ins)
        s.a(ins.replace('s[30:31]','s[14:15]')+' sc1')
    def loop(s,loads,check,sleep,dual):
        a=s.a; lp=a.label('poll'); dn=a.label('pdone')
        a('s_mov_b32 s42, 0')
        if dual:
            a('s_mov_b64 s[58:59], s[30:31]' if s.local else 's_mov_b64 s[58:59], s[14:15]')
            loads=loads.replace('s[30:31]','s[58:59]')
        a(f'{lp}:'); a(loads); a('s_waitcnt vmcnt(0)')
        check()
        a(f's_cbranch_vccz {dn}')
        if sleep: a(f's_sleep {sleep}')
        a('s_add_u32 s42, s42, 1')
        if dual and s.local: a(f's_and_b32 s57, s42, {s.every-1}\ns_cselect_b64 s[58:59], s[30:31], s[14:15]')
        a(f's_cmp_lt_u32 s42, {s.limit}\ns_cbranch_scc1 {lp}\n{dn}:')
    def poll(s,loads,tags,t,sleep=0,dual=False):
        s.loop(loads,lambda: s.tagcheck(tags,t),sleep,dual)
    def pi(s,d,t):
        s.a(f'''v_bfe_u32 v{t}, v1, 3, 1
        v_and_b32 v{d}, 7, v1
        v_lshl_add_u32 v{d}, v{t}, 5, v{d}
        v_lshrrev_b32 v{t}, 4, v1
        v_lshl_add_u32 v{d}, v{t}, 3, v{d}''')
    def gi(s,d,t):
        s.a(f'''v_lshrrev_b32 v{t}, 4, v1
        v_and_b32 v{d}, 7, v1
        v_lshl_add_u32 v{d}, v{t}, 3, v{d}''')
    def diagadd(s,D):
        s.a(f'''v_permlane32_swap_b32 v{D}, v{D+1}
        v_permlane32_swap_b32 v{D+2}, v{D+3}
        v_add_f32_dpp v{D}, v{D+1}, v{D} row_ror:8 {DPPF}
        v_add_f32_dpp v{D+1}, v{D+3}, v{D+2} row_ror:8 {DPPF}''')
    def tred(s,v):
        s.a(f'''v_permlane32_swap_b32 v{v}, v{v+2}
        v_permlane32_swap_b32 v{v+1}, v{v+3}
        v_pk_add_f32 v[{v}:{v+1}], v[{v}:{v+1}], v[{v+2}:{v+3}]
        v_permlane16_swap_b32 v{v}, v{v+1}
        v_add_f32 v{v}, v{v}, v{v+1}''')
    def pollb(s,loads,quads,t,sleep=0,dual=False):
        a=s.a
        def check():
            TS=['s48','s50','s51','s52']; regs=[]
            for q in quads:
                for i in range(4): a(f'v_xor_b32 v{q+i}, {TS[i]}, v{q+i}'); regs.append(q+i)
            a(f'v_or3_b32 v{t}, v{regs[0]}, v{regs[1]}, v{regs[2]}\nv_or3_b32 v{t+1}, v{regs[3]}, v{regs[4]}, v{regs[5]}'); regs=regs[6:]; k=0
            while len(regs)>=2: a(f'v_or3_b32 v{t+k}, v{t+k}, v{regs[0]}, v{regs[1]}'); regs=regs[2:]; k^=1
            assert not regs
            a(f'v_bitop3_b32 v{t}, v{t}, v{t+1}, s53 bitop3:0xa8\nv_cmp_ne_u32 vcc, 0, v{t}')
        s.loop(loads,check,sleep,dual)
    def silu_exact(s,x,t):
        s.a(f'''v_mul_f32 v{t}, {hex(f2u(-LOG2E))}, v{x}
        v_exp_f32 v{t}, v{t}
        v_add_f32 v{t}, 1.0, v{t}
        v_rcp_f32 v{t+1}, v{t}
        v_mul_f32 v{t+2}, v{x}, v{t+1}
        v_fma_f32 v{t}, -v{t+2}, v{t}, v{x}
        v_fma_f32 v{t}, v{t}, v{t+1}, v{t+2}
        v_cmp_o_f32 vcc, v{t}, v{t}
        v_cndmask_b32 v{t}, v{t+2}, v{t}, vcc
        v_cvt_pk_bf16_f32 v{x}, v{t}, v{t}''')
    def lnfin2(s,LN,X,MU,VAR,t,exact):
        a=s.a
        a(f'''v_cvt_pk_bf16_f32 v{MU}, v{MU}, v{VAR}
        v_and_b32 v{VAR}, 0xffff0000, v{MU}
        v_lshlrev_b32 v{MU}, 16, v{MU}
        v_add_f32 v{VAR}, {hex(f2u(1e-5))}, v{VAR}
        v_sub_f32 v{MU}, v{X}, v{MU}
        v_cvt_pk_bf16_f32 v{MU}, v{MU}, v{VAR}
        v_and_b32 v{VAR}, 0xffff0000, v{MU}
        v_sqrt_f32 v{VAR}, v{VAR}
        v_lshlrev_b32 v{MU}, 16, v{MU}''')
        s.rnd(f'v{VAR}',f'v{VAR}')
        a(f'v_rcp_f32 v{t}, v{VAR}\nv_mul_f32 v{LN}, v{MU}, v{t}')
        if exact: a(f'v_fma_f32 v{MU}, -v{LN}, v{VAR}, v{MU}\nv_fma_f32 v{LN}, v{MU}, v{t}, v{LN}')
        s.rnd(f'v{LN}',f'v{LN}')
    def xt_publish_poll(s):
        a=s.a
        a(f'''s_getreg_b32 s47, hwreg(HW_REG_XCC_ID, 0, 4)
        s_lshl_b32 s36, s34, 8
        s_add_u32 s36, s36, {WS_XT}
        s_lshl_b32 s37, s35, 3
        s_add_u32 s37, s37, s36
        v_mov_b32 v8, s37
        v_mov_b32 v10, s47
        v_mov_b32 v11, s32
        s_mov_b64 exec, 1
        global_store_dwordx2 v8, v[10:11], s[30:31] sc1
        s_mov_b64 exec, -1
        v_min_u32 v8, 27, v1
        v_lshl_add_u32 v8, v8, 3, s36''')
        s.poll(f'global_load_dwordx2 v[10:11], v8, s[30:31] offset:{8*JF} sc1',[11],12,4)
        a('''v_cmp_ne_u32 vcc, s47, v10
        s_cmp_eq_u64 vcc, 0
        s_cselect_b32 s43, 1, 0''')
        if s.debug: a('s_mov_b32 s92, s43')
    def sum7(s,R,addr):
        a=s.a
        for w in range(7): a(f'ds_read_b64 v[{R+2*w}:{R+2*w+1}], v{addr} offset:{L_DD+512*w}')
        a('s_waitcnt lgkmcnt(0)')
        P=lambda i:f'v[{R+2*i}:{R+2*i+1}]'
        for (x,y) in ((0,1),(2,3),(4,5),(0,2),(4,6),(0,4)): a(f'v_pk_add_f32 {P(x)}, {P(x)}, {P(y)}')
    def tile_loads(s,A,n,addr,base,pitch):
        a=s.a
        if pitch==896:
            for i in range(n): a(f'global_load_dwordx4 v[{A+4*i}:{A+4*i+3}], v{addr}, {base} offset:{896*(i-3)} {s.wnt}')
        elif pitch==3584:
            for i in range(n):
                a(f'global_load_dwordx4 v[{A+4*i}:{A+4*i+3}], v{addr}, {base} offset:{3584*(i%3-1)} {s.wnt}')
                if i%3==2: a(f'v_add_u32 v{addr}, {3*3584}, v{addr}')
        else:
            for i in range(n):
                a(f'global_load_dwordx4 v[{A+4*i}:{A+4*i+3}], v{addr}, {base} {s.wnt}')
                if i<n-1: a(f'v_add_u32 v{addr}, {pitch}, v{addr}')
    def prologue(s):
        a=s.a
        if s.debug:
            for i in range(64,96,2): a(f's_mov_b64 s[{i}:{i+1}], 0')
        if s.pr: a('s_mov_b64 s[62:63], 0')
        s.stamp(0)
        a(f'''s_cmp_ge_u32 s2, 256
        s_cbranch_scc1 L_exit
        s_load_dwordx4 s[28:31], s[0:1], 96
        s_load_dwordx16 s[4:19], s[0:1], 0
        s_load_dwordx8 s[20:27], s[0:1], 64
        v_lshrrev_b32 v2, 6, v0
        v_and_b32 v1, 63, v0
        s_and_b32 s34, s2, 7
        s_lshr_b32 s35, s2, 3
        v_readfirstlane_b32 s33, v2
        s_cmp_lt_u32 s35, {JF}
        s_cbranch_scc1 L_F
        s_cmp_lt_u32 s35, {JQ}
        s_cbranch_scc1 L_Q
        s_sub_u32 s46, s35, {JQ}
        {'s_branch L_exit' if s.noA else ''}
        s_cmp_eq_u32 s33, 0
        s_cbranch_scc1 L_R''')
    def final_half(s,hf,S,T):
        a=s.a
        for w in range(7): a(f'ds_read_b128 v[{8+4*w}:{8+4*w+3}], v{T} offset:{L_P+2048*w+1024*hf}')
        def sc(w):
            r=S+w
            return (f'v[{r}:{r+1}]','op_sel:[0,0,0] op_sel_hi:[1,0,1]','op_sel:[0,0] op_sel_hi:[1,0]') if r%2==0 else (f'v[{r-1}:{r}]','op_sel:[0,1,0] op_sel_hi:[1,1,1]','op_sel:[0,1] op_sel_hi:[1,1]')
        for w in range(7):
            a(f's_waitcnt lgkmcnt({0 if (s.debug or s.pr) else 6-w})')
            p,m3,m2=sc(w)
            for h in (0,2):
                if w==0: a(f'v_pk_mul_f32 v[{40+h}:{41+h}], v[{8+h}:{9+h}], {p} {m2}')
                else: a(f'v_pk_fma_f32 v[{40+h}:{41+h}], v[{8+4*w+h}:{9+4*w+h}], {p}, v[{40+h}:{41+h}] {m3}')
        for r in range(4): a(f'v_bfi_b32 v{40+r}, s53, v{T+2+r}, v{40+r}')
        s.store2(f'global_store_dwordx4 v{T+1}, v[40:43], s[30:31]')
    def final_setup(s,hf,T,t):
        s.a(f'''v_lshlrev_b32 v{T}, 4, v1
        s_mul_i32 s36, s34, {8*NA*256}
        s_lshl_b32 s37, s46, 8
        s_add_u32 s36, s36, s37
        s_add_u32 s36, s36, {WS_H3+2*hf*NA*256}
        v_bfe_u32 v{t}, v1, 3, 1
        v_lshlrev_b32 v{t}, 2, v{t}
        v_lshrrev_b32 v{t+1}, 5, v1
        v_add_u32 v{t}, v{t}, v{t+1}
        v_mul_u32_u24 v{t}, {NA*256}, v{t}
        v_bfe_u32 v{t+1}, v1, 4, 1
        v_lshl_add_u32 v{t}, v{t+1}, 7, v{t}
        v_and_b32 v{t+1}, 7, v1
        v_lshl_add_u32 v{t}, v{t+1}, 4, v{t}
        v_add_u32 v{T+1}, s36, v{t}
        v_mov_b32 v{T+2}, s32
        v_mov_b32 v{T+3}, s50
        v_mov_b32 v{T+4}, s51
        v_mov_b32 v{T+5}, s52''')
    def awave(s):
        a=s.a; NG=8; s.role='A'
        K=8; V=72; D=136; S=152; Q=160; MK=168; O=172; T=180
        vK=2; vV=3
        a(f'''; ---------------- attention wave ----------------
        s_sub_u32 s44, s33, 1
        s_mul_i32 s36, s44, {NA}
        s_add_u32 s45, s36, s46
        s_lshl_b32 s37, s34, 23
        s_lshl_b32 s38, s45, 11
        s_add_u32 s37, s37, s38
        s_add_u32 s37, s37, {12288*512}
        v_lshrrev_b32 v4, 4, v1
        v_and_b32 v5, 15, v1
        v_lshlrev_b32 v{vV}, 9, v4
        v_lshl_add_u32 v{vV}, v5, 4, v{vV}
        v_and_b32 v6, 3, v1
        v_lshlrev_b32 v6, 4, v6
        v_lshl_add_u32 v6, v4, 6, v6
        v_lshrrev_b32 v5, 2, v5
        v_lshl_add_u32 v{vK}, v5, 9, v6
        s_waitcnt lgkmcnt(0)
        s_add_u32 s6, s6, s37
        s_addc_u32 s7, s7, 0
        s_add_u32 s8, s8, s37
        s_addc_u32 s9, s9, 0
        s_load_dword s32, s[30:31], 0''')
        s.stamp(7)
        if s.adelay==1: a('s_waitcnt lgkmcnt(0)')
        NOPT=1024-7*NW
        n=[0]
        def pair(reg,voff,base):
            w=s.win
            if n[0]<=s.win0: w=1
            if n[0]>=w: a(f's_waitcnt vmcnt({2*(w-1)})')
            if n[0]==s.win: s.stamp(8)
            a(f'global_load_dwordx4 v[{reg}:{reg+3}], v{voff}, {base} {s.nt}')
            a(f'global_load_dwordx4 v[{reg+4}:{reg+7}], v{voff}, {base} offset:256 {s.nt}')
            n[0]+=1
        def opt(R,vo,base):
            sk=a.label('skip')
            a(f's_cmp_ge_u32 s45, {NOPT}\ns_cbranch_scc1 {sk}\nv_add_u32 v7, {7*GS}, v{vo}')
            pair(R+56,7,base); a(f'{sk}:')
        def vpair(i):
            pair(V+8*i,vV,'s[8:9]')
            if i<6: a(f'v_add_u32 v{vV}, {GS}, v{vV}')
        opt(K,vK,'s[6:7]')
        for i in range(7):
            pair(K+8*i,vK,'s[6:7]')
            if i<6: a(f'v_add_u32 v{vK}, {GS}, v{vK}')
            if i==2:
                s.masks(MK)
                sk2=a.label('z')
                a(f's_cmp_lt_u32 s45, {NOPT}\ns_cbranch_scc1 {sk2}')
                for r in range(8): a(f'v_mov_b32 v{V+56+r}, 0')
                a(f'''{sk2}:
                v_bfe_u32 v5, v1, 3, 1
                v_lshl_add_u32 v{T+8}, v5, 9, v6
                s_lshl_b32 s36, s44, 2
                v_lshl_add_u32 v{T+9}, v5, 5, s36
                v_lshlrev_b32 v{T+10}, 5, v5
                s_lshl_b32 s36, s44, 11
                s_add_u32 s36, s36, {L_P}
                v_lshl_add_u32 v{T+11}, v1, 4, s36
                s_mov_b32 s47, {hex(f2u(LOG2E/16))}
                v_mov_b32 v{T+18}, 0
                s_waitcnt lgkmcnt(0)''')
                s.tagsetup(True)
                s.final_setup(1,T+12,T)
        s.stamp(1); a('s_barrier')
        opt(V,vV,'s[8:9]')
        kq=max(s.kq,s.win)
        for i in range(kq): vpair(i)
        a(f's_mov_b32 s49, {kq}')
        for p in range(kq,7):
            a(f'ds_read_b32 v{T+1}, v{T+18} offset:{L_FLAG}\ns_waitcnt lgkmcnt(0)\nv_cmp_ne_u32 vcc, 0, v{T+1}\ns_cbranch_vccnz L_A_qk')
            vpair(p); a(f's_mov_b32 s49, {p+1}')
        s.stamp(2)
        a(f'''s_mov_b32 s42, 0
        L_A_wq:
        ds_read_b32 v{T+1}, v{T+18} offset:{L_FLAG}
        s_waitcnt lgkmcnt(0)
        v_cmp_ne_u32 vcc, 0, v{T+1}
        s_cbranch_vccnz L_A_qk
        s_sleep 1
        s_add_u32 s42, s42, 1
        s_cmp_lt_u32 s42, {s.limit*16}
        s_cbranch_scc1 L_A_wq
        L_A_qk:''')
        s.stamp(3)
        if s.debug: a('s_mov_b32 s90, s49')
        a(f'''ds_read_b128 v[{Q}:{Q+3}], v{T+8} offset:{L_Q}
        ds_read_b128 v[{Q+4}:{Q+7}], v{T+8} offset:{L_Q+256}''')
        nxt=[kq]
        def more():
            if nxt[0]<7:
                sk=a.label('had')
                a(f's_cmp_gt_u32 s49, {nxt[0]}\ns_cbranch_scc1 {sk}')
                vpair(nxt[0]); a(f'{sk}:'); nxt[0]+=1
        more()
        a('s_waitcnt lgkmcnt(0)')
        def diag(i):
            d=D+4*(i%4)
            a(f'''v_mov_b32_dpp v{S+i}, v{d} quad_perm:[0,0,0,0] {DPPF}
            v_add_f32_dpp v{S+i}, v{d+1}, v{S+i} quad_perm:[1,1,1,1] {DPPF}
            v_add_f32_dpp v{S+i}, v{d+2}, v{S+i} quad_perm:[2,2,2,2] {DPPF}
            v_add_f32_dpp v{S+i}, v{d+3}, v{S+i} quad_perm:[3,3,3,3] {DPPF}''')
        for i in range(NG):
            d=D+4*(i%4)
            a(f'v_mfma_f32_16x16x32_bf16 v[{d}:{d+3}], v[{K+8*i}:{K+8*i+3}], v[{Q}:{Q+3}], 0')
            a(f'v_mfma_f32_16x16x32_bf16 v[{d}:{d+3}], v[{K+8*i+4}:{K+8*i+7}], v[{Q+4}:{Q+7}], v[{d}:{d+3}]')
            if i>=2: diag(i-2)
        diag(NG-2); diag(NG-1)
        sk=a.label('inf')
        a(f's_cmp_lt_u32 s45, {NOPT}\ns_cbranch_scc1 {sk}\nv_mov_b32 v{S+7}, 0xff800000\n{sk}:')
        for i in range(0,NG,2):
            a(f'v_cvt_pk_bf16_f32 v{T}, v{S+i}, v{S+i+1}\nv_lshlrev_b32 v{S+i}, 16, v{T}\nv_and_b32 v{S+i+1}, 0xffff0000, v{T}')
        a(f'''v_max3_f32 v{T}, v{S}, v{S+1}, v{S+2}
        v_max3_f32 v{T+1}, v{S+3}, v{S+4}, v{S+5}
        v_max3_f32 v{T}, v{T}, v{S+6}, v{S+7}
        v_max_f32 v{T}, v{T}, v{T+1}''')
        s.bfly('v_max_f32',T,T+1,16); s.bfly('v_max_f32',T,T+1,32)
        a(f'v_mul_f32 v{T}, s47, v{T}')
        for i in range(NG): a(f'v_fma_f32 v{S+i}, v{S+i}, s47, -v{T}')
        for i in range(NG): a(f'v_exp_f32 v{S+i}, v{S+i}')
        a(f'ds_write_b32 v{T+9}, v{T} offset:{L_M}\nv_add_f32 v{T+2}, v{S}, v{S+1}')
        for i in range(2,NG): a(f'v_add_f32 v{T+2}, v{T+2}, v{S+i}')
        s.bfly('v_add_f32',T+2,T+3,16); s.bfly('v_add_f32',T+2,T+3,32)
        a(f'ds_write_b32 v{T+9}, v{T+2} offset:{L_L}')
        more()
        a('s_waitcnt lgkmcnt(0)\ns_barrier')
        s.stamp(4)
        B=K
        order=[7]+list(range(7))
        for c,i in enumerate(order):
            a(f'v_cvt_pk_bf16_f32 v{T+1}, v{S+i}, v{S+i}')
            for r in range(4): a(f'v_and_b32 v{B+4*i+r}, v{T+1}, v{MK+r}')
            if c==7: more()
        first=True
        for c,i in enumerate(order):
            while i!=7 and nxt[0]<7 and nxt[0]<=i+s.win: more()
            idx=-1 if i==7 else i
            left=nxt[0]-1-idx
            if left<=s.win: a(f's_waitcnt vmcnt({2*left})')
            c0='0' if first else f'v[{O}:{O+3}]'; c1='0' if first else f'v[{O+4}:{O+7}]'; first=False
            a(f'v_mfma_f32_16x16x32_bf16 v[{O}:{O+3}], v[{V+8*i}:{V+8*i+3}], v[{B+4*i}:{B+4*i+3}], {c0}')
            a(f'v_mfma_f32_16x16x32_bf16 v[{O+4}:{O+7}], v[{V+8*i+4}:{V+8*i+7}], v[{B+4*i}:{B+4*i+3}], {c1}')
        assert nxt[0]==7
        s.stamp(5)
        a(f'''ds_write_b128 v{T+11}, v[{O}:{O+3}]
        ds_write_b128 v{T+11}, v[{O+4}:{O+7}] offset:1024
        s_waitcnt lgkmcnt(0)
        s_barrier
        s_cmp_lg_u32 s33, 1
        s_cbranch_scc1 L_A_end
        ds_read_b128 v[44:47], v{T+10} offset:{L_S}
        ds_read_b128 v[48:51], v{T+10} offset:{L_S+16}''')
        s.final_half(1,44,T+12)
        s.stamp(6)
        a('L_A_end:')
        s.end()
    def rwave(s):
        a=s.a; s.role='R'; T=60; S=44
        a('''L_R:
        s_waitcnt lgkmcnt(0)
        s_load_dword s32, s[30:31], 0''')
        if s.prefetch:
            a(f'''s_getpc_b64 s[36:37]
            L_pc:
            s_sub_u32 s36, s36, L_pc-{NAME}_kernel
            s_subb_u32 s37, s37, 0
            s_and_b32 s38, s35, 3
            s_lshl_b32 s38, s38, 12
            v_lshl_add_u32 v2, v1, 6, s38
            v_min_u32 v2, L_exit-{NAME}_kernel, v2
            global_load_dword v250, v2, s[36:37]''')
        a('s_waitcnt lgkmcnt(0)')
        s.stamp(1)
        s.tagsetup(True)
        s.final_setup(0,T,T+8)
        a(f'''s_lshl_b32 s36, s34, 11
        s_add_u32 s36, s36, {WS_H2}
        v_lshl_add_u32 v3, v1, 4, s36
        v_lshrrev_b32 v4, 4, v1
        v_lshlrev_b32 v6, 7, v4
        v_bfe_u32 v4, v1, 2, 1
        v_lshl_add_u32 v6, v4, 6, v6
        v_bfe_u32 v4, v1, 3, 1
        v_lshl_add_u32 v6, v4, 4, v6
        v_lshlrev_b32 v7, 5, v4
        v_and_b32 v5, 3, v1
        v_lshl_add_u32 v6, v5, 2, v6
        s_lshl_b32 s36, s34, 10
        s_lshl_b32 s37, s46, 4
        s_add_u32 s36, s36, s37
        s_add_u32 s36, s36, {WS_LSE}
        v_lshl_add_u32 v5, v4, 9, s36
        v_mov_b32 v21, 0
        ds_write_b32 v21, v21 offset:{L_FLAG}
        v_mov_b32 v22, 1
        s_waitcnt lgkmcnt(0)
        s_barrier''')
        s.stamp(2)
        s.poll('''global_load_dwordx4 v[8:11], v3, s[30:31] sc1
        global_load_dwordx4 v[12:15], v3, s[30:31] offset:1024 sc1''',[10,14],20,s.sleepq,True)
        a(f'''ds_write2_b32 v6, v8, v9 offset0:0 offset1:8
        ds_write2_b32 v6, v12, v13 offset0:128 offset1:136
        ds_write_b32 v21, v22 offset:{L_FLAG}''')
        s.stamp(3)
        if s.debug: a('s_mov_b32 s90, s42')
        a(f'''s_barrier
        ds_read_b128 v[{S}:{S+3}], v7 offset:{L_M}
        ds_read_b128 v[{S+4}:{S+7}], v7 offset:{L_M+16}
        ds_read_b128 v[8:11], v7 offset:{L_L}
        ds_read_b128 v[12:15], v7 offset:{L_L+16}
        v_mov_b32 v18, s32
        v_mov_b32 v19, s32
        s_waitcnt lgkmcnt(0)
        v_max3_f32 v16, v{S}, v{S+1}, v{S+2}
        v_max3_f32 v17, v{S+3}, v{S+4}, v{S+5}
        v_max3_f32 v16, v16, v17, v{S+6}''')
        for w in range(7): a(f'v_sub_f32 v{S+w}, v{S+w}, v16')
        for w in range(7): a(f'v_exp_f32 v{S+w}, v{S+w}')
        a(f'v_mul_f32 v17, v8, v{S}')
        for w in range(1,7): a(f'v_fmac_f32 v17, v{8+w}, v{S+w}')
        a('s_mov_b64 exec, 0x101')
        s.store2('global_store_dwordx4 v5, v[16:19], s[30:31]')
        a(f'''ds_write_b128 v7, v[{S}:{S+3}] offset:{L_S}
        ds_write_b128 v7, v[{S+4}:{S+7}] offset:{L_S+16}
        s_mov_b64 exec, -1
        s_waitcnt lgkmcnt(0)''')
        s.stamp(4)
        a('s_barrier')
        s.stamp(5)
        s.final_half(0,S,T)
        s.stamp(6)
        s.end()
    def common_lane(s,T):
        s.a(f'''v_lshrrev_b32 v2, 3, v1
        v_and_b32 v3, 7, v1
        v_lshlrev_b32 v3, 4, v3
        s_mov_b32 s54, 0x00ff00ff
        s_mov_b32 s55, 0x00ff00ff''')
    def qw(s):
        a=s.a; s.role='Q'
        MK=4; A=8; A2=40; A3=72; GT=104; DUP=124; B=132; D=140; T=148
        XC=160; LN=161; PI=162; TBW=163; TBR=164; DDW=165; CC=166; AD=167
        a(f'''L_Q:
        s_sub_u32 s44, s35, {JF}
        s_lshl_b32 s45, s44, 3
        s_add_u32 s45, s45, s34''')
        s.common_lane(T)
        a(f'''s_waitcnt lgkmcnt(0)
        s_load_dword s32, s[30:31], 0
        s_cmp_eq_u32 s33, 7
        s_cbranch_scc1 L_Q7''')
        s.pi(PI,T)
        a(f'''s_lshl_b32 s46, s33, 7
        v_lshl_add_u32 v{T}, v{PI}, 1, s46
        global_load_ushort v{XC}, v{T}, s[4:5]
        v_min_u32 v{T+1}, 55, v1
        v_lshlrev_b32 v{T+1}, 4, v{T+1}
        global_load_dwordx4 v[{GT}:{GT+3}], v{T+1}, s[4:5]
        v_lshl_add_u32 v{T}, v1, 1, s46
        global_load_ushort v{CC}, v{T}, s[22:23]
        s_lshl_b32 s36, s33, 19
        s_lshl_b32 s37, s34, 10
        s_add_u32 s36, s36, s37
        s_lshl_b32 s37, s44, 7
        s_add_u32 s36, s36, s37
        v_lshl_add_u32 v{AD}, v2, 16, v3
        v_add_u32 v{AD}, s36, v{AD}''')
        s.tile_loads(A,8,AD,'s[10:11]',8192)
        s.masks(MK)
        a(f'''s_lshl_b32 s36, s33, 8
        v_lshl_add_u32 v{TBW}, v{PI}, 2, s36
        v_lshl_add_u32 v{TBR}, v2, 5, s36
        v_lshl_add_u32 v{T+4}, v1, 2, s36
        s_lshl_b32 s36, s33, 9
        v_lshl_add_u32 v{DDW}, v1, 3, s36
        s_add_u32 s36, s36, {WS_H1A}
        v_lshrrev_b32 v{T}, 5, v1
        v_mul_u32_u24 v{T}, 7168, v{T}
        v_and_b32 v{T+1}, 31, v1
        v_lshlrev_b32 v{T+1}, 4, v{T+1}
        v_add3_u32 v{AD+1}, v{T}, v{T+1}, s36
        s_waitcnt vmcnt(8) lgkmcnt(0)''')
        s.tagsetup()
        a(f'v_lshlrev_b32 v{XC}, 16, v{XC}\nv_lshlrev_b32 v{CC}, 16, v{CC}')
        X=GT+4
        for r in range(4):
            a(f'v_lshlrev_b32 v{X+2*r}, 16, v{GT+r}\nv_and_b32 v{X+2*r+1}, 0xffff0000, v{GT+r}')
        a(f'v_cmp_gt_u32 s[48:49], 56, v1\nv_add_f32 v{T}, v{X}, v{X+1}')
        for r in range(2,8): a(f'v_add_f32 v{T}, v{T}, v{X+r}')
        a(f'v_cndmask_b32 v{T}, 0, v{T}, s[48:49]')
        s.wavesum(T,T+1)
        a(f'v_mul_f32 v{T}, {hex(f2u(1/448))}, v{T}')
        for r in range(8): a(f'v_sub_f32 v{X+r}, v{X+r}, v{T}')
        a(f'v_mul_f32 v{T+2}, v{X}, v{X}')
        for r in range(1,8): a(f'v_fmac_f32 v{T+2}, v{X+r}, v{X+r}')
        a(f'v_cndmask_b32 v{T+2}, 0, v{T+2}, s[48:49]')
        s.wavesum(T+2,T+1)
        a(f'v_mul_f32 v{T+2}, {hex(f2u(1/448))}, v{T+2}')
        s.lnfin2(LN,XC,T,T+2,T+3,True)
        s.silu_exact(CC,T)
        a(f'ds_write_b32 v{T+4}, v{CC} offset:{L_TB2}')
        s.stamp(1)
        s.poll(f'''global_load_dwordx4 v[{GT}:{GT+3}], v{AD+1}, s[30:31] sc1
        global_load_dwordx4 v[{GT+4}:{GT+7}], v{AD+1}, s[30:31] offset:3584 sc1''',[GT+2,GT+6],T,s.sleep3)
        s.stamp(2)
        if s.debug: a('s_mov_b32 s90, s42')
        a(f'''v_permlane32_swap_b32 v{GT}, v{GT+1}
        v_permlane32_swap_b32 v{GT+4}, v{GT+5}
        v_add_f32 v{T}, v{GT}, v{GT+1}
        v_add_f32 v{T+1}, v{GT+4}, v{GT+5}
        v_cvt_pk_bf16_f32 v{T}, v{T}, v{T+1}
        v_and_b32 v{T+1}, 0xffff0000, v{T}
        v_lshlrev_b32 v{T}, 16, v{T}
        v_add_f32 v{T+1}, 1.0, v{T+1}''')
        s.rnd(f'v{T+1}',f'v{T+1}')
        s.modulate(LN,T+1,T,T+2,TBW,TBR,DUP)
        s.gemv_steps(D,A,DUP,8,MK,B)
        s.diagadd(D)
        a(f'''ds_write_b64 v{DDW}, v[{D}:{D+1}] offset:{L_DD}
        s_mul_i32 s36, s33, {64*5376}
        s_lshl_b32 s37, s45, 7
        s_add_u32 s36, s36, s37
        s_add_u32 s36, s36, 1792
        v_mul_u32_u24 v{AD}, {8*5376}, v2
        v_add3_u32 v{AD}, v{AD}, v3, s36
        s_waitcnt lgkmcnt(0)
        s_barrier''')
        s.stamp(3)
        a(f'''s_lshl_b32 s36, s34, 9
        s_lshl_b32 s37, s44, 6
        s_add_u32 s36, s36, s37
        s_mul_i32 s36, s36, 896
        s_lshl_b32 s37, s33, 7
        s_add_u32 s36, s36, s37
        s_add_u32 s36, s36, {3*896}
        v_mul_u32_u24 v{AD+2}, {8*896}, v2
        v_add3_u32 v{AD+2}, v{AD+2}, v3, s36
        s_mul_i32 s36, s34, 28672
        s_lshl_b32 s37, s33, 12
        s_add_u32 s36, s36, s37
        s_lshl_b32 s37, s44, 9
        s_add_u32 s36, s36, s37
        s_add_u32 s36, s36, {WS_H35}''')
        s.gi(AD+1,T)
        a(f'''v_lshl_add_u32 v{AD+1}, v{AD+1}, 4, s36
        s_barrier''')
        if not s.mbfirst: s.tile_loads(A3,8,AD+2,'s[12:13]',896)
        a(f'''s_cmp_ge_u32 s45, 28
        s_cbranch_scc1 L_Q_nomb''')
        s.tile_loads(A2,8,AD,'s[24:25]',5376)
        if s.mbfirst: s.tile_loads(A3,8,AD+2,'s[12:13]',896)
        a(f'''ds_read_b128 v[{DUP}:{DUP+3}], v{TBR} offset:{L_TB2}
        ds_read_b128 v[{DUP+4}:{DUP+7}], v{TBR} offset:{L_TB2+16}
        s_waitcnt vmcnt({8 if s.mbfirst else 0}) lgkmcnt(0)''')
        s.gemv_steps(D,A2,DUP,8,MK,B)
        s.diagadd(D)
        a(f'''ds_write_b64 v{DDW}, v[{D}:{D+1}] offset:{L_DD}
        s_waitcnt lgkmcnt(0)
        s_barrier''')
        if s.mbfirst:
            a('s_branch L_Q_mbd\nL_Q_nomb:')
            s.tile_loads(A3,8,AD+2,'s[12:13]',896)
            a('L_Q_mbd:')
        else: a('L_Q_nomb:')
        s.stamp(4)
        a(f'''v_lshlrev_b32 v{TBR}, 5, v2
        s_waitcnt vmcnt(0)''')
        s.stamp(5)
        a(f'''s_barrier
        ds_read_b128 v[{DUP}:{DUP+3}], v{TBR} offset:{L_OT}
        ds_read_b128 v[{DUP+4}:{DUP+7}], v{TBR} offset:{L_OT+16}
        s_waitcnt lgkmcnt(0)''')
        s.stamp(6)
        s.gemv_steps(D,A3,DUP,8,MK,B)
        s.diagadd(D)
        a(f'v_mov_b32 v{D+2}, s32\nv_mov_b32 v{D+3}, s32\ns_mov_b64 exec, s[54:55]')
        s.store2(f'global_store_dwordx4 v{AD+1}, v[{D}:{D+3}], s[30:31]')
        s.stamp(7)
        a('s_branch L_Q_end')
        W=40; H=60
        s.role='H'
        a(f'''L_Q7:
        s_mul_i32 s36, s34, {8*NA*256}
        s_mul_i32 s37, s44, {NA*256}
        s_add_u32 s36, s36, s37
        s_add_u32 s36, s36, {WS_H3+2048}
        v_lshl_add_u32 v100, v1, 4, s36
        s_mul_i32 s36, s34, 28672
        s_min_u32 s37, s44, 6
        s_lshl_b32 s37, s37, 12
        s_add_u32 s36, s36, s37
        s_add_u32 s36, s36, {WS_H35+2048}
        v_lshl_add_u32 v101, v1, 4, s36''')
        s.gi(T,T+1)
        s.pi(PI,T+1)
        a(f'''v_lshlrev_b32 v102, 3, v1
        s_lshl_b32 s36, s34, 11
        s_lshl_b32 s37, s44, 8
        s_add_u32 s36, s36, s37
        s_add_u32 s36, s36, {WS_H2}
        v_lshl_add_u32 v103, v{T}, 3, s36
        s_lshl_b32 s36, s45, 8
        s_add_u32 s36, s36, {WS_H1B}
        v_lshl_add_u32 v104, v{T}, 3, s36
        s_lshl_b32 s36, s34, 10
        s_lshr_b32 s37, s44, 2
        s_lshl_b32 s37, s37, 9
        s_add_u32 s36, s36, s37
        s_add_u32 s36, s36, {WS_LSE}
        v_lshrrev_b32 v{T+1}, 4, v1
        v_lshl_add_u32 v105, v{T+1}, 4, s36
        v_lshlrev_b32 v106, 2, v{PI}
        s_mul_i32 s36, s34, 1792
        s_lshl_b32 s37, s44, 8
        s_add_u32 s36, s36, s37
        s_add_u32 s36, s36, {WS_H4}
        v_and_b32 v{T+2}, 15, v1
        v_lshlrev_b32 v{T+2}, 4, v{T+2}
        v_lshl_add_u32 v{T+2}, v{T+1}, 2, v{T+2}
        v_add_u32 v107, s36, v{T+2}
        s_waitcnt lgkmcnt(0)''')
        s.tagsetup(True)
        a(f'v_lshlrev_b32 v{T+1}, 3, v{T+1}\nv_lshrrev_b32 v108, v{T+1}, s32')
        s.stamp(1)
        a('s_barrier')
        s.sum7(8,102)
        a(f'''v_mov_b32_dpp v10, v8 quad_perm:[1,1,3,3] {DPPF}
        v_mov_b32_dpp v11, v9 quad_perm:[1,1,3,3] {DPPF}
        v_cvt_pk_bf16_f32 v8, v8, v10
        v_cvt_pk_bf16_f32 v9, v9, v11
        v_mov_b32 v10, s32
        v_mov_b32 v11, s32
        s_mov_b32 exec_lo, 0x00550055
        s_mov_b32 exec_hi, 0x00550055''')
        s.store2('global_store_dwordx4 v103, v[8:11], s[30:31]')
        a('s_mov_b64 exec, -1')
        s.stamp(3)
        if s.prewarm:
            for k in range(5): a(f'global_load_dwordx4 v[{H+4*k}:{H+4*k+3}], v100, s[30:31] offset:{1024*k-2048} sc1')
            for k in range(4): a(f'global_load_dwordx4 v[{H+20+4*k}:{H+20+4*k+3}], v101, s[30:31] offset:{1024*k-2048} sc1')
        a('''s_barrier
        s_cmp_ge_u32 s45, 28
        s_cbranch_scc1 L_Q7_nomb
        s_barrier''')
        s.sum7(8,102)
        a(f'''v_cvt_pk_bf16_f32 v8, v8, v9
        v_mov_b32 v9, s32
        s_mov_b64 exec, s[54:55]
        global_store_dwordx2 v104, v[8:9], s[30:31] sc1
        s_mov_b64 exec, -1
        L_Q7_nomb:''')
        s.stamp(4)
        s.poll('\n'.join(f'global_load_dwordx4 v[{8+4*k}:{8+4*k+3}], v105, s[30:31] offset:{64*k} sc1' for k in range(5)),[10+4*k for k in range(5)],T,4,True)
        s.stamp(5)
        a(f'v_max3_f32 v{T}, v8, v12, v16\nv_max3_f32 v{T}, v{T}, v20, v24')
        s.bfly('v_max_f32',T,T+1,16); s.bfly('v_max_f32',T,T+1,32)
        for k in range(5): a(f'v_sub_f32 v{W+k}, v{8+4*k}, v{T}')
        for k in range(5): a(f'v_exp_f32 v{W+k}, v{W+k}')
        a(f'v_mul_f32 v{T}, v9, v{W}')
        for k in range(1,5): a(f'v_fmac_f32 v{T}, v{9+4*k}, v{W+k}')
        s.bfly('v_add_f32',T,T+1,16); s.bfly('v_add_f32',T,T+1,32)
        a(f'v_rcp_f32 v{T}, v{T}')
        for k in range(5): a(f'v_mul_f32 v{W+k}, v{W+k}, v{T}')
        s.pollb('\n'.join(f'global_load_dwordx4 v[{H+4*k}:{H+4*k+3}], v100, s[30:31] offset:{1024*k-2048} sc1' for k in range(5)),[H+4*k for k in range(5)],T,s.sleep3,True)
        s.stamp(6)
        if s.debug: a('s_mov_b32 s88, s42')
        for k in range(5):
            r=W+k
            p,m3,m2=(f'v[{r}:{r+1}]','op_sel:[0,0,0] op_sel_hi:[1,0,1]','op_sel:[0,0] op_sel_hi:[1,0]') if r%2==0 else (f'v[{r-1}:{r}]','op_sel:[0,1,0] op_sel_hi:[1,1,1]','op_sel:[0,1] op_sel_hi:[1,1]')
            for h in (0,2):
                if k==0: a(f'v_pk_mul_f32 v[{8+h}:{9+h}], v[{H+h}:{H+1+h}], {p} {m2}')
                else: a(f'v_pk_fma_f32 v[{8+h}:{9+h}], v[{H+4*k+h}:{H+4*k+1+h}], {p}, v[{8+h}:{9+h}] {m3}')
        s.tred(8)
        a(f'''v_cvt_pk_bf16_f32 v8, v8, v8
        ds_write_b32 v106, v8 offset:{L_OT}
        s_waitcnt lgkmcnt(0)
        s_barrier''')
        s.stamp(7)
        a('''s_cmp_eq_u32 s44, 7
        s_cbranch_scc1 L_Q_end''')
        s.poll('\n'.join(f'global_load_dwordx4 v[{8+4*k}:{8+4*k+3}], v101, s[30:31] offset:{1024*k-2048} sc1' for k in range(4)),[10,14,18,22],T,s.sleep3,True)
        s.stamp(8)
        if s.debug: a('s_mov_b32 s86, s42')
        a(f'''v_pk_add_f32 v[8:9], v[8:9], v[12:13]
        v_pk_add_f32 v[16:17], v[16:17], v[20:21]
        v_pk_add_f32 v[8:9], v[8:9], v[16:17]
        v_permlane32_swap_b32 v8, v9
        v_add_f32 v8, v8, v9
        v_bfi_b32 v8, s53, v108, v8
        global_store_dword v107, v8, s[30:31] sc1''')
        s.stamp(9)
        a('L_Q_end:')
        s.end()
    def modulate(s,LN,SC,SH,t,TBW,TBR,DUP):
        a=s.a
        a(f'v_mul_f32 v{t}, v{LN}, v{SC}'); s.rnd(f'v{t}',f'v{t}')
        a(f'''v_add_f32 v{t}, v{t}, v{SH}
        v_cvt_pk_bf16_f32 v{t}, v{t}, v{t}
        ds_write_b32 v{TBW}, v{t} offset:{L_TB}
        ds_read_b128 v[{DUP}:{DUP+3}], v{TBR} offset:{L_TB}
        ds_read_b128 v[{DUP+4}:{DUP+7}], v{TBR} offset:{L_TB+16}
        s_waitcnt lgkmcnt(0)''')
    def ffn(s):
        a=s.a; s.role='F'
        MK=4; A=8; A2=40; A3=72; GT=104; DUP=124; B=132; D=140; T=148
        XC=160; LN=161; PI=162; TBW=163; TBR=164; DDW=165; CC=166; AD=167; GA=172; SB=173; CB=174; SH=175
        a(f'''L_F:
        s_lshl_b32 s45, s35, 3
        s_add_u32 s45, s45, s34
        s_cmp_ge_u32 s45, 28
        s_cbranch_scc1 L_exit''')
        s.common_lane(T)
        a(f'''s_and_b32 s46, s45, 1
        s_mul_i32 s36, s46, 224
        s_lshl_b32 s37, s33, 5
        s_add_u32 s36, s36, s37
        v_and_b32 v{T+2}, 31, v1
        v_add_u32 v{T}, s36, v{T+2}
        v_lshlrev_b32 v{T}, 1, v{T}
        s_mul_i32 s36, s36, 5376
        s_lshr_b32 s37, s45, 1
        s_lshl_b32 s37, s37, 7
        s_add_u32 s36, s36, s37
        v_mul_u32_u24 v{AD}, {4*5376}, v2
        v_add3_u32 v{AD}, v{AD}, v3, s36
        s_waitcnt lgkmcnt(0)
        s_load_dword s32, s[30:31], 0
        s_cmp_eq_u32 s33, 7
        s_cbranch_scc1 L_F7
        global_load_ushort v{CC}, v{T}, s[22:23]''')
        s.tile_loads(GT,4,AD,'s[24:25]',5376)
        s.pi(PI,T)
        a(f'''s_lshl_b32 s36, s33, 7
        v_lshl_add_u32 v{T}, v{PI}, 1, s36
        global_load_ushort v{XC}, v{T}, s[4:5]
        v_lshl_add_u32 v{T+4}, v{T+2}, 2, s36
        v_lshl_add_u32 v{T+5}, v2, 4, s36''')
        s.masks(MK)
        a(f'''s_lshl_b32 s36, s33, 8
        v_lshl_add_u32 v{TBW}, v{PI}, 2, s36
        v_lshl_add_u32 v{TBR}, v2, 5, s36
        s_lshl_b32 s36, s33, 9
        v_lshl_add_u32 v{DDW}, v1, 3, s36
        s_mul_i32 s36, s33, {64*3584}
        s_lshl_b32 s37, s45, 7
        s_add_u32 s36, s36, s37
        s_add_u32 s36, s36, 3584
        v_mul_u32_u24 v{AD}, {8*3584}, v2
        v_add3_u32 v{AD}, v{AD}, v3, s36
        v_mov_b32 v{AD+1}, v{AD}
        s_waitcnt vmcnt(5)
        v_lshlrev_b32 v{CC}, 16, v{CC}''')
        s.silu_exact(CC,T)
        a(f'''ds_write_b32 v{T+4}, v{CC} offset:{L_TB2}
        ds_read_b128 v[{DUP}:{DUP+3}], v{T+5} offset:{L_TB2}
        s_waitcnt vmcnt(1) lgkmcnt(0)''')
        s.stamp(1)
        s.gemv_steps(D,GT,DUP,4,MK,B)
        s.diagadd(D)
        a(f'''ds_write_b64 v{DDW}, v[{D}:{D+1}] offset:{L_DD}
        s_waitcnt lgkmcnt(0)
        s_barrier''')
        s.tagsetup(True)
        a(f'''s_lshl_b32 s36, s33, 8
        s_add_u32 s36, s36, {WS_H1B}
        v_lshrrev_b32 v{T+1}, 5, v1
        v_mul_u32_u24 v{T}, 1792, v{T+1}
        v_and_b32 v{T+2}, 31, v1
        v_lshlrev_b32 v{T+2}, 3, v{T+2}
        v_add3_u32 v{AD+2}, v{T}, v{T+2}, s36
        v_lshlrev_b32 v{T+1}, 4, v{T+1}
        v_sub_u32 v{SH}, 16, v{T+1}
        s_barrier''')
        s.stamp(2)
        s.tile_loads(A,8,AD,'s[16:17]',3584)
        s.tile_loads(A2,8,AD+1,'s[18:19]',3584)
        s.stamp(3)
        a(f'''s_mul_i32 s36, s45, {64*896}
        s_lshl_b32 s37, s33, 7
        s_add_u32 s36, s36, s37
        s_add_u32 s36, s36, {3*896}
        v_mul_u32_u24 v{AD}, {8*896}, v2
        v_add3_u32 v{AD}, v{AD}, v3, s36''')
        if not s.ddefer: s.tile_loads(A3,8,AD,'s[20:21]',896)
        s.poll(f'''global_load_dwordx2 v[{GT}:{GT+1}], v{AD+2}, s[30:31] sc1
        global_load_dwordx2 v[{GT+2}:{GT+3}], v{AD+2}, s[30:31] offset:3584 sc1''',[GT+1,GT+3],T,8)
        s.stamp(4)
        if s.ddefer: s.tile_loads(A3,8,AD,'s[20:21]',896)
        a(f'''v_lshlrev_b32 v{XC}, 16, v{XC}
        v_mov_b32 v{GT+1}, v{GT}
        v_mov_b32 v{GT+3}, v{GT+2}
        v_permlane32_swap_b32 v{GT}, v{GT+1}
        v_permlane32_swap_b32 v{GT+2}, v{GT+3}''')
        for k,dst in enumerate((GA,SB,CB,T+6)):
            a(f'v_lshlrev_b32 v{dst}, v{SH}, v{GT+k}\nv_and_b32 v{dst}, 0xffff0000, v{dst}')
        a(f'v_add_f32 v{CB}, 1.0, v{CB}'); s.rnd(f'v{CB}',f'v{CB}')
        a(f'''ds_write_b32 v{TBW}, v{T+6} offset:{L_GB}
        s_lshl_b32 s36, s33, 8
        s_add_u32 s36, s36, {WS_H4+3584}
        v_lshrrev_b32 v{T}, 4, v1
        v_mul_u32_u24 v{T}, 1792, v{T}
        v_and_b32 v{T+1}, 15, v1
        v_lshlrev_b32 v{T+1}, 4, v{T+1}
        v_add3_u32 v{AD}, v{T}, v{T+1}, s36
        v_lshrrev_b32 v{T}, 5, v1
        s_lshl_b32 s36, s33, 2
        v_lshl_add_u32 v{AD+1}, v{T}, 5, s36
        v_mov_b32 v{AD+2}, 0
        s_mul_i32 s36, s33, {4*3584}
        s_lshl_b32 s37, s45, 7
        s_add_u32 s36, s36, s37
        s_add_u32 s36, s36, {WS_H5}
        v_lshrrev_b32 v{T}, 4, v1
        v_mul_u32_u24 v{T}, 3584, v{T}
        v_add3_u32 v{AD+3}, v{T}, v3, s36
        v_lshlrev_b32 v{AD+4}, 5, v2''')
        s.stamp(5)
        s.pollb(f'''global_load_dwordx4 v[{GT}:{GT+3}], v{AD}, s[30:31] offset:-3584 sc1
        global_load_dwordx4 v[{GT+4}:{GT+7}], v{AD}, s[30:31] offset:3584 sc1''',[GT,GT+4],T,s.sleep4)
        s.stamp(6)
        if s.debug: a('s_mov_b32 s88, s42')
        a(f'v_pk_add_f32 v[{GT}:{GT+1}], v[{GT}:{GT+1}], v[{GT+4}:{GT+5}]\nv_pk_add_f32 v[{GT+2}:{GT+3}], v[{GT+2}:{GT+3}], v[{GT+6}:{GT+7}]')
        s.tred(GT)
        s.rnd(f'v{T}',f'v{GT}')
        a(f'v_mul_f32 v{T}, v{GA}, v{T}'); s.rnd(f'v{T}',f'v{T}')
        a(f'v_add_f32 v{T}, v{XC}, v{T}'); s.rnd(f'v{XC}',f'v{T}')
        a(f'v_mul_f32 v{T+1}, v{XC}, v{XC}\nv_add_f32_dpp v{T}, v{XC}, v{XC} row_ror:1 {DPPF}\nv_add_f32_dpp v{T+1}, v{T+1}, v{T+1} row_ror:1 {DPPF}\nds_write_b32 v{TBW}, v{XC} offset:{L_X1}')
        for k in (2,4,8): a(f'v_add_f32_dpp v{T}, v{T}, v{T} row_ror:{k} {DPPF}\nv_add_f32_dpp v{T+1}, v{T+1}, v{T+1} row_ror:{k} {DPPF}')
        a(f'v_permlane32_swap_b32 v{T}, v{T+1}\nv_add_f32 v{T}, v{T}, v{T+1}')
        s.bfly('v_add_f32',T,T+1,16)
        a(f'''ds_write_b32 v{AD+1}, v{T} offset:{L_ST}
        s_waitcnt lgkmcnt(0)
        s_barrier
        ds_read_b128 v[{GT}:{GT+3}], v{AD+2} offset:{L_ST}
        ds_read_b128 v[{GT+8}:{GT+11}], v{AD+2} offset:{L_ST+32}
        ds_read_b128 v[{GT+4}:{GT+7}], v{AD+2} offset:{L_ST+16}
        ds_read_b128 v[{GT+12}:{GT+15}], v{AD+2} offset:{L_ST+48}
        s_waitcnt lgkmcnt(0)
        v_pk_add_f32 v[{GT}:{GT+1}], v[{GT}:{GT+1}], v[{GT+2}:{GT+3}]
        v_pk_add_f32 v[{GT+8}:{GT+9}], v[{GT+8}:{GT+9}], v[{GT+10}:{GT+11}]
        v_pk_add_f32 v[{GT}:{GT+1}], v[{GT}:{GT+1}], v[{GT+4}:{GT+5}]
        v_pk_add_f32 v[{GT+8}:{GT+9}], v[{GT+8}:{GT+9}], v[{GT+12}:{GT+13}]
        v_add_f32 v{GT}, v{GT}, v{GT+1}
        v_add_f32 v{GT+8}, v{GT+8}, v{GT+9}
        v_add_f32 v{T}, v{GT}, v{GT+6}
        v_add_f32 v{T+2}, v{GT+8}, v{GT+14}
        v_mul_f32 v{T}, {hex(f2u(1/448))}, v{T}
        v_mul_f32 v{T+2}, {hex(f2u(1/448))}, v{T+2}
        v_fma_f32 v{T+2}, -v{T}, v{T}, v{T+2}
        v_max_f32 v{T+2}, 0, v{T+2}''')
        s.lnfin2(LN,XC,T,T+2,T+3,False)
        s.stamp(7)
        s.modulate(LN,CB,SB,T+2,TBW,TBR,DUP)
        U=D+4
        for i in range(9):
            if i<8:
                b=B+4*(i&1)
                for r in range(4): a(f'v_and_b32 v{b+r}, v{DUP+i}, v{MK+r}')
            if i>0:
                j=i-1; bj=B+4*(j&1)
                for (d,aa) in ((D,A),(U,A2)):
                    a(f'v_mfma_f32_16x16x32_bf16 v[{d}:{d+3}], v[{aa+4*j}:{aa+4*j+3}], v[{bj}:{bj+3}], {"0" if j==0 else f"v[{d}:{d+3}]"}')
        s.diagadd(D)
        a(f'''v_permlane32_swap_b32 v{U}, v{U+1}
        v_permlane32_swap_b32 v{U+2}, v{U+3}
        v_add_f32_dpp v{D}, v{U}, v{U+1} row_ror:8 row_mask:0xf bank_mask:0xc
        v_add_f32_dpp v{D+1}, v{U+2}, v{U+3} row_ror:8 row_mask:0xf bank_mask:0xc
        ds_write_b64 v{DDW}, v[{D}:{D+1}] offset:{L_DD}
        s_waitcnt lgkmcnt(0)
        s_barrier''')
        s.stamp(8)
        a(f'''s_barrier
        ds_read_b128 v[{DUP}:{DUP+3}], v{AD+4} offset:{L_OT}
        ds_read_b128 v[{DUP+4}:{DUP+7}], v{AD+4} offset:{L_OT+16}
        s_waitcnt lgkmcnt(0)''')
        s.stamp(9)
        s.gemv_steps(D,A3,DUP,8,MK,B)
        s.diagadd(D)
        a(f'''v_mov_b32 v{D+2}, s32
        v_mov_b32 v{D+3}, s32
        s_mov_b64 exec, s[54:55]
        global_store_dwordx4 v{AD+3}, v[{D}:{D+3}], s[30:31] sc1''')
        s.stamp(10)
        a('s_branch L_F_end')
        s.role='G'
        a('L_F7:')
        s.gi(T,T+1)
        a(f'''v_lshlrev_b32 v102, 3, v1
        s_mul_i32 s36, s46, 7168
        s_lshr_b32 s37, s45, 1
        s_lshl_b32 s37, s37, 9
        s_add_u32 s36, s36, s37
        s_add_u32 s36, s36, {WS_H1A}
        v_lshl_add_u32 v103, v{T}, 4, s36
        s_waitcnt lgkmcnt(0)''')
        s.tagsetup()
        a('s_barrier')
        s.sum7(8,102)
        a(f'''v_mov_b32 v10, s32
        v_mov_b32 v11, s32
        s_mov_b64 exec, s[54:55]
        global_store_dwordx4 v103, v[8:11], s[30:31] sc1
        s_mov_b64 exec, -1''')
        s.stamp(2)
        a(f'''s_barrier
        v_bfe_u32 v{T}, v1, 4, 1
        v_lshlrev_b32 v104, 7, v{T}
        v_lshrrev_b32 v{T}, 5, v1
        v_lshl_add_u32 v104, v{T}, 5, v104
        v_bfe_u32 v{T}, v1, 3, 1
        v_lshl_add_u32 v104, v{T}, 6, v104
        v_lshrrev_b32 v{T+1}, 2, v3
        v_add_u32 v104, v104, v{T+1}
        v_lshlrev_b32 v{T}, 4, v{T}
        v_sub_u32 v105, 16, v{T}
        s_lshr_b32 s36, s45, 2
        s_lshl_b32 s36, s36, 6
        s_and_b32 s37, s45, 1
        s_lshl_b32 s37, s37, 5
        s_add_u32 s36, s36, s37
        s_and_b32 s37, s45, 2
        s_lshl_b32 s37, s37, 2
        s_add_u32 s36, s36, s37
        s_lshl_b32 s37, s36, 2
        v_add_u32 v106, s37, v{T+1}
        v_add_u32 v109, {L_GB}, v106
        v_add_u32 v106, {L_X1}, v106
        s_lshl_b32 s37, s36, 1
        v_lshrrev_b32 v107, 3, v3
        v_add_u32 v107, s37, v107
        s_mul_i32 s36, s45, 3584
        s_add_u32 s36, s36, {WS_H5}
        v_lshl_add_u32 v108, v1, 4, s36
        v_mov_b32 v36, 0
        v_mov_b32 v37, 0
        v_mov_b32 v38, s32
        s_mov_b32 s56, 0xff00ff00
        s_mov_b32 s57, 0xff00ff00
        s_barrier
        s_barrier''')
        s.stamp(8)
        s.sum7(8,102)
        a(f'''v_cvt_pk_bf16_f32 v8, v8, v9
        v_mov_b32_dpp v9, v8 row_ror:8 {DPPF}
        v_cndmask_b32 v10, v8, v9, s[56:57]
        v_cndmask_b32 v11, v9, v8, s[56:57]
        v_lshlrev_b32 v10, v105, v10
        v_lshlrev_b32 v11, v105, v11
        v_and_b32 v10, 0xffff0000, v10
        v_and_b32 v11, 0xffff0000, v11''')
        s.silu(10,10,12); s.rnd('v10','v10')
        a(f'''v_mul_f32 v10, v10, v11
        v_cvt_pk_bf16_f32 v10, v10, v10
        ds_write_b32 v104, v10 offset:{L_OT}
        s_waitcnt lgkmcnt(0)
        s_barrier''')
        s.stamp(9)
        a(f'''ds_read2_b32 v[40:41], v106 offset0:0 offset1:16
        ds_read2_b32 v[42:43], v109 offset0:0 offset1:16
        s_waitcnt lgkmcnt(0)''')
        s.poll('''global_load_dwordx4 v[24:27], v108, s[30:31] sc1
        global_load_dwordx4 v[28:31], v108, s[30:31] offset:1024 sc1
        global_load_dwordx4 v[32:35], v108, s[30:31] offset:2048 sc1
        s_mov_b32 exec_hi, 0
        global_load_dwordx4 v[36:39], v108, s[30:31] offset:3072 sc1
        s_mov_b32 exec_hi, -1''',[26,30,34,38],T,s.sleep5)
        s.stamp(10)
        if s.debug: a('s_mov_b32 s86, s42')
        a(f'''v_pk_add_f32 v[24:25], v[24:25], v[28:29]
        v_pk_add_f32 v[32:33], v[32:33], v[36:37]
        v_pk_add_f32 v[24:25], v[24:25], v[32:33]
        v_add_f32_dpp v24, v24, v24 row_ror:8 {DPPF}
        v_add_f32_dpp v25, v25, v25 row_ror:8 {DPPF}
        v_mov_b32 v26, v24
        v_mov_b32 v27, v25
        v_permlane16_swap_b32 v26, v24
        v_permlane16_swap_b32 v27, v25
        v_pk_add_f32 v[24:25], v[24:25], v[26:27]
        v_mov_b32 v26, v24
        v_mov_b32 v27, v25
        v_permlane32_swap_b32 v26, v24
        v_permlane32_swap_b32 v27, v25
        v_pk_add_f32 v[24:25], v[24:25], v[26:27]
        v_cvt_pk_bf16_f32 v24, v24, v25
        v_and_b32 v25, 0xffff0000, v24
        v_lshlrev_b32 v24, 16, v24
        v_pk_mul_f32 v[24:25], v[24:25], v[42:43]
        v_cvt_pk_bf16_f32 v24, v24, v25
        v_and_b32 v25, 0xffff0000, v24
        v_lshlrev_b32 v24, 16, v24
        v_pk_add_f32 v[24:25], v[24:25], v[40:41]
        v_cvt_pk_bf16_f32 v24, v24, v25
        v_mov_b32 v{T}, 0
        v_mov_b32 v{T+1}, s32
        s_mov_b64 exec, 0xff
        global_store_short v107, v24, s[26:27]
        global_store_short_d16_hi v107, v24, s[26:27] offset:32
        s_cmp_lg_u32 s45, 0
        s_cbranch_scc1 L_F_end
        s_mov_b64 exec, 1
        global_store_dword v{T}, v{T+1}, s[30:31] sc1
        L_F_end:''')
        s.end()
    def build(s):
        s.prologue(); s.awave(); s.rwave(); s.qw(); s.ffn()
        s.a('L_exit:\ns_endpgm')
        body=pad(s.a.text())
        hdr=open('cdna_kernels/'+NAME+'.s.ref').read().split('; Override launch')[0]
        return f'''{hdr}; One persistent launch, one 8-wave workgroup per CU. Generated by my own script (work/gen2.py).
; @launch grid=(256,1,1) block=(512,1,1) lds=16384
.amdgcn_target "amdgcn-amd-amdhsa--gfx950"
.text
.globl {NAME}_kernel
.p2align 8
.type {NAME}_kernel,@function
{NAME}_kernel:
{body}
.section .rodata,"a"
.p2align 6
.amdhsa_kernel {NAME}_kernel
  .amdhsa_next_free_vgpr 256
  .amdhsa_next_free_sgpr 102
  .amdhsa_accum_offset 256
  .amdhsa_group_segment_fixed_size 0
  .amdhsa_kernarg_size 112
  .amdhsa_user_sgpr_count 2
  .amdhsa_user_sgpr_kernarg_segment_ptr 1
  .amdhsa_system_sgpr_workgroup_id_x 1
  .amdhsa_float_denorm_mode_32 3
.end_amdhsa_kernel
'''
if __name__=='__main__':
    out=sys.argv[1]
    kw={}
    for x in sys.argv[2:]:
        k,v=x.split('=')
        kw[k]=int(v) if v.lstrip('-').isdigit() else v
    open(out,'w').write(G2(**kw).build())
```
